```python
import torch

def _softmax(x, axis=-1):
    return torch.softmax(x, dim=axis)

def _gelu(x):
    return torch.nn.functional.gelu(x, approximate='tanh')

def _silu(x):
    return torch.nn.functional.silu(x)

def _sigmoid(x):
    return torch.sigmoid(x)

def _layernorm(x, axis=-1, eps=1e-05):
    m = x.mean(dim=axis, keepdim=True)
    v = x.var(dim=axis, keepdim=True, unbiased=False)
    return (x - m) / torch.sqrt(v + eps)

def _scatter_add(tgt, idx, src, axis=0):
    return tgt.clone().index_add_(axis, idx, src)

def _segment_sum(src, seg, n):
    out = torch.zeros((n,) + src.shape[1:], dtype=src.dtype)
    return out.index_add_(0, seg, src)

def _pad(x, pw):
    flat = tuple((v for pair in reversed(pw) for v in pair))
    return torch.nn.functional.pad(x, flat)
kernel_name = 'adaLN_cond__sliding_block_cached__dense_activation_squared_relu__prompt'

def setup_inputs():

    _w = lambda a: (lambda t: t.to(torch.bfloat16) if t.is_floating_point() else t)(torch.as_tensor(a))

    def _A_setup():
        B, Sq, D = (1, 2048, 640)
        Hq, Hkv, Sk, Dh = (32, 32, 2048, 128)
        assert Hq % Hkv == 0, (Hq, Hkv)
        return {'x': _w((lambda *s: torch.randn(*s, dtype=torch.bfloat16) * 0.05)(B, Sq, D)), 'k_cache': _w((lambda *s: torch.randn(*s, dtype=torch.bfloat16) * 3.2)(B, Hkv, Sk, Dh)), 'v_cache': _w((lambda *s: torch.randn(*s, dtype=torch.bfloat16) * 0.4)(B, Hkv, Sk, Dh)), 'wq': _w((lambda *s: torch.randn(*s, dtype=torch.bfloat16) * 3.2)(D, Hq * Dh) * D ** (-0.5)), 'wo': _w((lambda *s: torch.randn(*s, dtype=torch.bfloat16) * 0.4)(Hq * Dh, D) * (Hq * Dh) ** (-0.5))}
    _A_in = _A_setup()

    def _B_setup():
        B, S, D, F = (1, 2048, 640, 1728)
        return {'x': _w((lambda *s: torch.randn(*s, dtype=torch.bfloat16) * 0.05)(B, S, D)), 'w1': _w((lambda *s: torch.randn(*s, dtype=torch.bfloat16) * 0.05)(D, F)), 'b1': _w((lambda *s: torch.randn(*s, dtype=torch.bfloat16) * 0.8)(F)), 'w2': _w((lambda *s: torch.randn(*s, dtype=torch.bfloat16) * 0.05)(F, D)), 'b2': _w((lambda *s: torch.randn(*s, dtype=torch.bfloat16) * 6.4)(D))}
    _B_in = _B_setup()
    return {'A_x': _A_in['x'], 'A_k_cache': _A_in['k_cache'], 'A_v_cache': _A_in['v_cache'], 'A_wq': _A_in['wq'], 'A_wo': _A_in['wo'], 'B_x': _B_in['x'], 'B_w1': _B_in['w1'], 'B_b1': _B_in['b1'], 'B_w2': _B_in['w2'], 'B_b2': _B_in['b2'], 'c': _w((lambda *s: torch.randn(*s, dtype=torch.bfloat16) * 0.1)(1, 640) * 8.0), 'w_mod': _w((lambda *s: torch.randn(*s, dtype=torch.bfloat16) * 0.1)(640, 6 * 640) * 640 ** (-0.5) * 8.0)}

def reference(A_x, A_k_cache, A_v_cache, A_wq, A_wo, B_x, B_w1, B_b1, B_w2, B_b2, c, w_mod):

    def _A_ref(x, k_cache, v_cache, wq, wo):
        B, Sq, D = x.shape
        Hq, Dh = (32, 128)
        Hkv, Sk = (k_cache.shape[1], k_cache.shape[2])
        W = min(4096, max(256, Sk // 4))
        rep = Hq // Hkv
        q = (lambda x, *d: x.permute(*d))((x @ wq).reshape(B, Sq, Hq, Dh), 0, 2, 1, 3)
        k = (lambda x, n, axis: torch.repeat_interleave(x, n, dim=axis))(k_cache[:, :, Sk - W:, :], rep, axis=1)
        v = (lambda x, n, axis: torch.repeat_interleave(x, n, dim=axis))(v_cache[:, :, Sk - W:, :], rep, axis=1)
        scores = torch.einsum('bhqd,bhkd->bhqk', q, k) * Dh ** (-0.5)
        p = _softmax(scores, axis=-1)
        o = torch.einsum('bhqk,bhkd->bhqd', p, v)
        return (lambda x, *d: x.permute(*d))(o, 0, 2, 1, 3).reshape(B, Sq, Hq * Dh) @ wo

    def _B_ref(x, w1, b1, w2, b2):
        h = torch.einsum('bsd,df->bsf', x, w1) + b1
        zero = torch.zeros_like(h)
        r = torch.where(h > zero, h, zero)
        h = r * r
        out = torch.einsum('bsf,fd->bsd', h, w2) + b2
        return out
    x = A_x
    mod = (_silu(c) @ w_mod).reshape(c.shape[0], 6, 1, -1)
    sa, ca, ga, sb, cb, gb = (mod[:, 0].clone(), mod[:, 1].clone(), mod[:, 2].clone(), mod[:, 3].clone(), mod[:, 4].clone(), mod[:, 5].clone())
    h = _layernorm(x, axis=-1) * (1 + ca) + sa
    x = x + ga * _A_ref(h, A_k_cache, A_v_cache, A_wq, A_wo)
    h = _layernorm(x, axis=-1) * (1 + cb) + sb
    x = x + gb * _B_ref(h, B_w1, B_b1, B_w2, B_b2)
    return x
```

```python
import re
REG = re.compile(r'^(-|\|)?(v|s|a)(\d+|\[(\d+):(\d+)\])\|?$')
def regs(tok):
    tok = tok.strip()
    t = tok.replace('neg(', '').replace('abs(', '').replace(')', '') if '(' in tok else tok
    t = t.lstrip('-').strip('|')
    if t in ('vcc',): return [('s', 'vcc')]
    if t in ('exec',): return [('s', 'exec')]
    if t == 'm0': return [('s', 'm0')]
    if t == 'scc': return []
    m = re.match(r'^(v|s|a)(\d+)$', t)
    if m: return [(m.group(1), int(m.group(2)))]
    m = re.match(r'^(v|s|a)\[(\d+):(\d+)\]$', t)
    if m: return [(m.group(1), i) for i in range(int(m.group(2)), int(m.group(3)) + 1)]
    return []
TRANS = ('v_exp_f32', 'v_log_f32', 'v_rcp_f32', 'v_rsq_f32', 'v_sqrt_f32', 'v_sin_f32', 'v_cos_f32', 'v_rcp_iflag_f32')
def vr(a, n=1): return f"v{a}" if n == 1 else f"v[{a}:{a+n-1}]"
def sr(a, n=1): return f"s{a}" if n == 1 else f"s[{a}:{a+n-1}]"

class Ins:
    __slots__ = ('text', 'mn', 'w', 'r', 'kind', 'passes', 'A', 'B', 'C', 'D', 'pos', 'dpp', 'wide')

class Asm:
    def __init__(self):
        self.lines = []; self.pos = 0; self.hist = []
        self.vm_n = 0; self.lg_n = 0
        self.vm_done = 0; self.lg_done = 0
        self.pend = {}
        self.tok = {}
        self.smem_out = False
        self.nins = 0; self.stats = {}
    def raw(self, text): self.lines.append(text)
    def comment(self, t): self.lines.append(f"  ; {t}")
    def label(self, name, flush=True):
        if flush: self.flush()
        self.lines.append(f"{name}:")
    def flush(self):
        if self.vm_done < self.vm_n or self.lg_done < self.lg_n or self.smem_out:
            self.wait(vm=0 if self.vm_done < self.vm_n else None, lg=0 if (self.lg_done < self.lg_n or self.smem_out) else None)
        need = 0
        for h in self.hist:
            d = self.pos - h.pos - 1
            if h.kind == 'mfma': need = max(need, (12 if h.passes == 8 else 8) - d)
            elif h.kind in ('valu', 'store'): need = max(need, 5 - d)
            elif h.kind == 'salu': need = max(need, 1 - d)
        self.nop(need)
        self.hist = []
    def nop(self, n):
        while n > 0:
            k = min(n, 16); self.lines.append(f"  s_nop {k-1}"); self.pos += k; n -= k; self.nins += 1
            self.stats['nop'] = self.stats.get('nop', 0) + k
    def wait(self, vm=None, lg=None):
        parts = []
        if vm is not None:
            vm = min(vm, 63)
            if self.vm_n - vm > self.vm_done: parts.append(f"vmcnt({vm})"); self.vm_done = self.vm_n - vm
        if lg is not None:
            lg = min(lg, 15)
            if self.lg_n - lg > self.lg_done or (lg == 0 and self.smem_out):
                parts.append(f"lgkmcnt({lg})"); self.lg_done = self.lg_n - lg
                if lg == 0: self.smem_out = False
        if parts:
            self.lines.append("  s_waitcnt " + " ".join(parts)); self.pos += 1; self.nins += 1
            self.stats['wait'] = self.stats.get('wait', 0) + 1
            for k in [k for k, (t, s) in self.pend.items() if (t == 'vm' and s < self.vm_done) or (t == 'lg' and s < self.lg_done) or (t == 'sm' and not self.smem_out)]:
                del self.pend[k]
    def wait_tok(self, *toks):
        s = max(self.tok[t] for t in toks)
        self.wait(vm=self.vm_n - s - 1)
    def parse(self, text):
        t = text.split(';')[0].strip()
        mn, _, rest = t.partition(' ')
        ops = [o.strip() for o in re.split(r',(?![^\[]*\])', rest)] if rest.strip() else []
        mods = ''
        if ops:
            last = ops[-1].split(None, 1)
            ops[-1] = last[0] if last else ''
            mods = last[1] if len(last) > 1 else ''
        I = Ins(); I.text = text; I.mn = mn; I.w = []; I.r = []; I.passes = 0; I.dpp = ('row_' in mods or 'quad_perm' in mods or 'wave_' in mods or '_dpp' in mn); I.wide = False
        R = lambda i: regs(ops[i]) if i < len(ops) else []
        allr = lambda s: [x for o in ops[s:] for x in regs(o)]
        if mn.startswith('v_mfma'):
            I.kind = 'mfma'; I.passes = 8 if '32x32' in mn else 4
            I.D, I.A, I.B, I.C = R(0), R(1), R(2), R(3); I.w = I.D; I.r = I.A + I.B + I.C
        elif mn.startswith('v_'):
            I.kind = 'valu'
            if mn.startswith('v_cmpx'): I.w = [('s', 'exec')]; I.r = allr(0)
            elif mn.startswith('v_cmp'): I.w = R(0); I.r = allr(1)
            elif mn.startswith('v_permlane') and 'swap' in mn: I.w = R(0) + R(1); I.r = R(0) + R(1)
            elif mn.startswith('v_swap'): I.w = R(0) + R(1); I.r = R(0) + R(1)
            elif '_co_' in mn: I.w = R(0) + R(1); I.r = allr(2)
            elif mn.startswith(('v_fmac', 'v_mac', 'v_dot2c', 'v_writelane', 'v_pk_fmac')): I.w = R(0); I.r = allr(0)
            elif mn.startswith('v_cndmask') and len(ops) == 3: I.w = R(0); I.r = allr(1) + [('s', 'vcc')]
            else: I.w = R(0); I.r = allr(1)
            if I.dpp and 'bound_ctrl' not in mods: I.r = I.r + R(0)
        elif mn.startswith('ds_'):
            if mn.startswith(('ds_read', 'ds_bpermute', 'ds_permute', 'ds_swizzle')) or '_rtn' in mn: I.kind = 'dsr'; I.w = R(0); I.r = allr(1)
            else: I.kind = 'dsw'; I.r = allr(0)
        elif mn.startswith(('buffer_load', 'global_load')):
            if ' lds' in (' ' + mods) or 'load_lds' in mn: I.kind = 'dma'; I.r = allr(0) + [('s', 'm0')]
            else: I.kind = 'vload'; I.w = R(0); I.r = allr(1)
        elif mn.startswith(('buffer_store', 'global_store')):
            I.kind = 'store'; I.r = allr(0); I.wide = mn.endswith(('x3', 'x4'))
        elif mn.startswith(('buffer_atomic', 'global_atomic')):
            if 'sc0' in mods: I.kind = 'vload'; I.w = R(0); I.r = allr(0)
            else: I.kind = 'store'; I.r = allr(0)
        elif mn.startswith(('buffer_inv', 'buffer_wbl2')): I.kind = 'store'
        elif mn.startswith(('s_load', 's_memtime', 's_memrealtime', 's_buffer_load')): I.kind = 'smem'; I.w = R(0); I.r = allr(1)
        elif mn.startswith(('s_cmp', 's_cbranch', 's_branch', 's_barrier', 's_endpgm', 's_setprio', 's_sleep', 's_bitcmp', 's_sethalt')):
            I.kind = 'salu'; I.r = allr(0)
        elif mn.startswith('s_'):
            I.kind = 'salu'; I.w = R(0); I.r = allr(1)
            if 'saveexec' in mn: I.w = I.w + [('s', 'exec')]
        else: raise ValueError("unknown instr " + text)
        return I
    def _waits(self, I):
        W = set(I.w); Rd = set(I.r)
        vm = lg = None
        for x in W | Rd:
            p = self.pend.get(x)
            if p:
                if p[0] == 'vm': n = self.vm_n - p[1] - 1; vm = n if vm is None else min(vm, n)
                elif p[0] == 'lg':
                    n = 0 if self.smem_out else self.lg_n - p[1] - 1
                    lg = n if lg is None else min(lg, n)
                else: lg = 0
        return vm, lg
    def _need(self, I):
        W = set(I.w); Rd = set(I.r)
        need = 0
        isv = I.kind == 'valu'; ismem = I.kind in ('dsr', 'dsw', 'dma', 'vload', 'store')
        isvmem = I.kind in ('dma', 'vload', 'store')
        for h in self.hist:
            d = self.pos - h.pos - 1
            req = 0
            hw = set(h.w)
            if h.kind == 'mfma':
                big, ovl, war = (12, 10, 7) if h.passes == 8 else (8, 6, 3)
                if I.kind == 'mfma':
                    if hw & (set(I.A) | set(I.B)): req = max(req, big)
                    if hw & set(I.C) and not (I.C == h.D and I.passes == h.passes): req = max(req, ovl)
                    if hw & set(I.D) and not (I.C == h.D and I.D == h.D): req = max(req, ovl)
                elif isv or ismem:
                    if hw & (W | Rd): req = max(req, big)
                    if isv and set(h.C) & W: req = max(req, war)
                    if I.kind in ('dsr', 'vload') and set(h.C) & W: req = max(req, war)
            elif h.kind == 'valu':
                vw = {x for x in hw if x[0] != 's'}; sw = {x for x in hw if x[0] == 's'}
                isdot = h.mn.startswith('v_dot')
                if I.kind == 'mfma':
                    if vw & Rd: req = max(req, 3 if isdot else 2)
                    if ('s', 'exec') in sw: req = max(req, 4)
                if isv:
                    if isdot and (vw & (W | Rd)):
                        ops_c_only = (I.mn == h.mn) and not (vw & set(self._dot_ab(I)))
                        if not ops_c_only: req = max(req, 3)
                    if h.mn.startswith(TRANS) and not I.mn.startswith(TRANS) and (vw & Rd): req = max(req, 1)
                    if I.mn.startswith(('v_readlane', 'v_readfirstlane')) and (vw & Rd): req = max(req, 1)
                    if I.mn.startswith('v_permlane') and (vw & Rd): req = max(req, 2)
                    if I.dpp and (vw & Rd): req = max(req, 2)
                    if sw & Rd: req = max(req, 4 if I.mn.startswith(('v_readlane', 'v_writelane', 'v_div_fmas')) else 2)
                    if ('s', 'exec') in sw: req = max(req, 5 if I.dpp else 4)
                if isvmem and (sw & Rd): req = max(req, 5)
                if ismem and isdot and (vw & Rd): req = max(req, 3)
                if ismem and h.mn.startswith(TRANS) and (vw & Rd): req = max(req, 1)
                if I.kind == 'salu' and (sw & Rd): req = max(req, 1)
            elif h.kind == 'salu':
                if ('s', 'm0') in hw and I.kind == 'dma': req = max(req, 1)
                if ('s', 'exec') in hw and I.dpp: req = max(req, 5)
            elif h.kind == 'store':
                if h.wide and (set(h.r) & W): req = max(req, 2 if isv else 1)
            need = max(need, req - d)
        return need
    def probe(self, text):
        I = self.parse(text)
        vm, lg = self._waits(I)
        w = (vm is not None and self.vm_n - min(vm, 63) > self.vm_done) or (lg is not None and (self.lg_n - min(lg, 15) > self.lg_done or self.smem_out))
        return max(0, self._need(I) - (1 if w else 0)), w
    def __call__(self, text, tok=None):
        I = self.parse(text)
        isvmem = I.kind in ('dma', 'vload', 'store')
        vm, lg = self._waits(I)
        if vm is not None or lg is not None: self.wait(vm, lg)
        self.nop(self._need(I))
        I.pos = self.pos
        self.lines.append("  " + text); self.pos += 1; self.nins += 1
        self.stats[I.kind] = self.stats.get(I.kind, 0) + 1
        self.hist.append(I); self.hist = [h for h in self.hist if self.pos - h.pos <= 21]
        if isvmem:
            for x in I.w: self.pend[x] = ('vm', self.vm_n)
            if tok is not None: self.tok[tok] = self.vm_n
            self.vm_n += 1
        elif I.kind in ('dsr', 'dsw'):
            for x in I.w: self.pend[x] = ('lg', self.lg_n)
            self.lg_n += 1
        elif I.kind == 'smem':
            for x in I.w: self.pend[x] = ('sm', 0)
            self.smem_out = True
        return I
    def barrier(self, vm=None, lg=0):
        if lg is not None and self.smem_out: lg = 0
        self.wait(vm=vm, lg=lg)
        self("s_barrier")
    def _dot_ab(self, I):
        t = I.text.split(';')[0].strip(); rest = t.partition(' ')[2]
        ops = [o.strip().split()[0] for o in re.split(r',(?![^\[]*\])', rest)]
        return regs(ops[1]) + regs(ops[2])
    def srd(self, s, lo, hi, nbytes):
        self(f"s_mov_b32 s{s}, s{lo}"); self(f"s_mov_b32 s{s+1}, s{hi}")
        self(f"s_mov_b32 s{s+2}, {nbytes}"); self(f"s_mov_b32 s{s+3}, 0x00020000")
    def text(self): return "\n".join(self.lines)

def kdesc(name, vgprs, accum=None, sgprs=102):
    accum = accum or min(256, (vgprs + 3) // 4 * 4)
    return f""".p2align 6
.amdhsa_kernel {name}
  .amdhsa_next_free_vgpr {vgprs}
  .amdhsa_next_free_sgpr {sgprs}
  .amdhsa_accum_offset {accum}
  .amdhsa_group_segment_fixed_size 0
  .amdhsa_kernarg_size 120
  .amdhsa_user_sgpr_count 2
  .amdhsa_user_sgpr_kernarg_segment_ptr 1
  .amdhsa_system_sgpr_workgroup_id_x 1
.end_amdhsa_kernel"""

def build_file(kernels):
    hdr = "".join(f"; @launch kernel={k['name']} grid=({k['grid']},1,1) block=({k['block']},1,1) lds={k['lds']}\n" for k in kernels)
    seen = []; body = ""; kds = ""
    for k in kernels:
        if k['name'] in seen: continue
        seen.append(k['name'])
        body += f".globl {k['name']}\n.p2align 8\n.type {k['name']},@function\n{k['name']}:\n{k['asm'].text()}\n"
        kds += kdesc(k['name'], k['vgprs'], k.get('accum')) + "\n"
    return hdr + '.amdgcn_target "amdgcn-amd-amdhsa--gfx950"\n.text\n' + body + '.section .rodata,"a"\n' + kds
```

```python
from asmlib import *
MODF = 0
MODB = 16384
T12P = 0x8000
STAT = 0x60000
NBUF = 0x100000
HBUF = 0x400000
X1B  = 0x700000
Y2B  = 0xA00000
OBUF = 0x1000000
UBUF = 0x2000000
WOP  = 0x2800000
W2P  = 0x2E00000
W1P  = 0x3100000
MPAY = 0x3400000
HFL  = 0x3500000
WS_BYTES = 268435456
KA_X, KA_K, KA_V, KA_WQ, KA_WO, KA_BX, KA_W1, KA_B1, KA_W2, KA_B2, KA_C, KA_WMOD, KA_OUT, KA_DBG, KA_WS = [8 * i for i in range(15)]
SZ = {KA_X: 2048*640*2, KA_K: 32*2048*128*2, KA_V: 32*2048*128*2, KA_WQ: 640*4096*2, KA_WO: 4096*640*2, KA_W1: 640*1728*2,
      KA_B1: 1728*2, KA_W2: 1728*640*2, KA_B2: 640*2, KA_C: 640*2, KA_WMOD: 640*3840*2, KA_OUT: 2048*640*2, KA_WS: WS_BYTES, KA_DBG: 256}
LOG2E = 1.4426950408889634
import struct
def f32(x): return "0x%08x" % struct.unpack('<I', struct.pack('<f', x))[0]

def load_srds(a, items):
    for b, off in items: a(f"s_load_dwordx2 s[{b}:{b+1}], s[0:1], {off}")
    for b, off in items:
        a(f"s_mov_b32 s{b+2}, {SZ[off]}"); a(f"s_mov_b32 s{b+3}, 0x00020000")

def rnd2(a, x, y, t, mask):
    a(f"v_cvt_pk_bf16_f32 v{t}, v{x}, v{y}")
    a(f"v_lshlrev_b32 v{x}, 16, v{t}")
    a(f"v_and_b32 v{y}, s{mask}, v{t}")
def unpack2(a, x, y, t, mask):
    a(f"v_lshlrev_b32 v{x}, 16, v{t}")
    a(f"v_and_b32 v{y}, s{mask}, v{t}")
def rnd1(a, x):
    a(f"v_cvt_pk_bf16_f32 v{x}, v{x}, v{x}")
    a(f"v_lshlrev_b32 v{x}, 16, v{x}")
def xsum_swap(a, x, t, which):
    a(f"v_mov_b32 v{t}, v{x}")
    a(f"v_permlane{which}_swap_b32 v{x}, v{t}")
    a(f"v_add_f32 v{x}, v{x}, v{t}")
```

```python
from common import *
import math
def gen_k2(PF=6, CAP=20, HW=24):
    a = Asm()
    NWG = 256
    TRL, TRH, KR = 1, 5, 9
    DWQ0, DWQ1, DV, DK0, DK1, L16 = 17, 18, 19, 20, 21, 22
    L0, L1, MFLOOR, VMAX, T0, T1, T2, T3 = 23, 24, 25, 26, 27, 28, 29, 30
    NM, SB, PB, HB, ACC, QF, AB = 32, 48, 96, 32, 128, 192, 224
    NB = 8
    sW, sHD, sRB, sM0, sH, sKV, sO, sMODE, sD, sHC, sSC, sO2 = 20, 21, 22, 23, 24, 25, 26, 27, 28, 29, 30, 31
    FLAG = 131072
    a(f"s_cmp_ge_u32 s2, {NWG}"); a("s_cbranch_scc1 K2_END")
    load_srds(a, [(4, KA_WQ), (16, KA_WS), (8, KA_K), (12, KA_V)])
    a(f"v_readfirstlane_b32 s{sW}, v0"); a(f"s_lshr_b32 s{sW}, s{sW}, 6")
    a(f"s_and_b32 s{sHD}, s2, 7"); a(f"s_lshl_b32 s{sHD}, s{sHD}, 2"); a("s_bfe_u32 s32, s2, 0x20003"); a(f"s_add_u32 s{sHD}, s{sHD}, s32")
    a(f"s_lshr_b32 s{sRB}, s2, 5")
    a(f"s_lshl_b32 s{sM0}, s{sW}, 11")
    a(f"s_lshl_b32 s32, s{sRB}, 3"); a(f"s_add_u32 s32, s32, s{sW}")
    a(f"s_mul_i32 s{sH}, s32, 40960"); a(f"s_add_u32 s{sH}, s{sH}, {HBUF}")
    a(f"s_lshl_b32 s{sKV}, s{sHD}, 19"); a(f"s_add_u32 s{sKV}, s{sKV}, {1536*256}")
    a(f"s_lshl_b32 s{sO}, s32, 18"); a(f"s_lshl_b32 s33, s{sHD}, 13"); a(f"s_add_u32 s{sO}, s{sO}, s33"); a(f"s_add_u32 s{sO}, s{sO}, {OBUF}")
    a(f"s_add_u32 s{sO2}, s{sO}, 4096")
    a(f"s_mov_b32 s{sMODE}, 0"); a(f"s_mov_b32 s{sSC}, {f32(LOG2E / math.sqrt(128.0))}")
    a("s_mov_b64 s[34:35], 0")
    la, g, q2, c4 = 40, 41, 42, 43
    a(f"v_and_b32 v{la}, 63, v0"); a(f"v_lshrrev_b32 v{g}, 4, v{la}"); a(f"v_bfe_u32 v{q2}, v0, 2, 2"); a(f"v_and_b32 v{c4}, 3, v0")
    a(f"v_lshlrev_b32 v{L16}, 4, v{la}")
    a(f"v_xor_b32 v44, v{q2}, v{g}"); a("v_lshlrev_b32 v44, 6, v44"); a(f"v_lshl_add_u32 v44, v{c4}, 4, v44")
    a(f"v_lshl_add_u32 v{DWQ0}, v{g}, 13, v44")
    a(f"s_lshl_b32 s32, s{sW}, 16"); a(f"s_lshl_b32 s33, s{sHD}, 8"); a("s_add_u32 s32, s32, s33")
    a(f"v_add_u32 v{DWQ0}, s32, v{DWQ0}"); a(f"v_add_u32 v{DWQ1}, {4*8192-1024}, v{DWQ0}")
    a.label("K2_START", flush=True)
    def dma(x):
        kind, j = slots[x]; buf = bufof(x)
        if kind == 'W': a(f"s_mov_b32 s{sD}, {j*524288}")
        else: a(f"s_add_u32 s{sD}, s{sKV}, {j*16384}")
        a(f"s_add_u32 m0, s{sM0}, {buf*16384}")
        v0_, v1_, srd = {'W': (DWQ0, DWQ1, 4), 'K': (DK0, DK1, 8), 'V': (DV, DV, 12)}[kind]
        return [f"buffer_load_dwordx4 v{v0_}, s[{srd}:{srd+3}], s{sD} offen lds", f"buffer_load_dwordx4 v{v1_}, s[{srd}:{srd+3}], s{sD} offen offset:1024 lds"]
    slots = [('W', i) for i in range(10)] + [('K', 0)]
    for j in range(1, 8): slots += [('K', j), ('V', j-1)]
    slots += [('V', 7)]
    def bufof(x):
        kind, j = slots[x]
        return j % 8 if kind == 'W' else ((j + 2) % 4 if kind == 'K' else 4 + j % 4)
    def hload(f):
        if f % 4 == 0: a(f"s_add_u32 s{sHC}, s{sH}, {1024*f}")
        r = HB + 4 * (f % HW)
        a(f"buffer_load_dwordx4 v[{r}:{r+3}], v{L16}, s[16:19], s{sHC} offen offset:{1024*(f % 4)}")
    for x in range(8):
        d = dma(x); a(d[0]); a(d[1], tok=('s', x))
        if 4 * x < HW:
            for f in range(4*x, 4*x+4): hload(f)
    la, g, q2, c4, t5, t6 = AB, AB+1, AB+2, AB+3, AB+4, AB+5
    a(f"v_and_b32 v{la}, 63, v0"); a(f"v_lshrrev_b32 v{g}, 4, v{la}"); a(f"v_bfe_u32 v{q2}, v0, 2, 2"); a(f"v_and_b32 v{c4}, 3, v0")
    a(f"v_xor_b32 v{t5}, v{q2}, v{g}"); a(f"v_lshlrev_b32 v{t5}, 6, v{t5}"); a(f"v_lshl_add_u32 v{t5}, v{c4}, 4, v{t5}")
    a(f"v_lshl_add_u32 v{DV}, v{g}, 8, v{t5}"); a(f"v_add_u32 v{DV}, s{sM0}, v{DV}")
    a(f"s_and_b32 s32, s{sW}, 1"); a("s_lshl_b32 s32, s32, 3")
    a(f"v_add_u32 v{t5}, s32, v{g}"); a(f"v_and_b32 v{t6}, 15, v0"); a(f"v_xor_b32 v{t5}, v{t5}, v{t6}")
    a(f"v_lshlrev_b32 v{DK0}, 8, v{g}"); a(f"v_add_u32 v{DK0}, s{sM0}, v{DK0}")
    a(f"v_xor_b32 v{t6}, 4, v{t5}")
    a(f"v_lshl_add_u32 v{DK1}, v{t6}, 4, v{DK0}"); a(f"v_lshl_add_u32 v{DK0}, v{t5}, 4, v{DK0}")
    a(f"v_lshrrev_b32 v{t5}, 1, v{g}"); a(f"v_lshl_add_u32 v{t5}, v{t5}, 3, v{q2}"); a(f"v_lshlrev_b32 v{t5}, 8, v{t5}")
    a(f"v_and_b32 v{t6}, 1, v{g}"); a(f"v_lshl_add_u32 v{t5}, v{t6}, 5, v{t5}")
    a(f"v_and_b32 v{t6}, 1, v{c4}"); a(f"v_lshl_add_u32 v{t5}, v{t6}, 4, v{t5}")
    a(f"v_lshrrev_b32 v{t6}, 1, v{c4}"); a(f"v_lshl_add_u32 v{t5}, v{t6}, 3, v{t5}")
    for b in range(4):
        a(f"v_xor_b32 v{t6}, {b}, v{q2}"); a(f"v_lshl_add_u32 v{TRL+b}, v{t6}, 6, v{t5}"); a(f"v_add_u32 v{TRH+b}, 0x10000, v{TRL+b}")
    a(f"v_and_b32 v{t5}, 19, v0"); a(f"v_bfe_u32 v{t6}, v0, 2, 1"); a(f"v_lshl_add_u32 v{t5}, v{t6}, 3, v{t5}")
    a(f"v_bfe_u32 v{t6}, v0, 3, 1"); a(f"v_lshl_add_u32 v{t5}, v{t6}, 2, v{t5}")
    a(f"v_and_b32 v{t6}, 15, v{t5}"); a(f"v_lshrrev_b32 v{g}, 5, v{la}"); a(f"v_xor_b32 v{t6}, v{t6}, v{g}")
    a(f"v_lshlrev_b32 v{t6}, 4, v{t6}"); a(f"v_lshl_add_u32 v{t5}, v{t5}, 8, v{t6}")
    for t in range(8): a(f"v_xor_b32 v{KR+t}, {32*t}, v{t5}")
    a(f"v_mov_b32 v{L0}, 0"); a(f"v_mov_b32 v{L1}, 0")
    a(f"s_cmp_lg_u32 s{sMODE}, 0"); a("s_cbranch_scc1 K2_NOINIT")
    a(f"v_mov_b32 v{MFLOOR}, 0xff800000")
    a.label("K2_NOINIT", flush=False)
    a(f"v_mov_b32 v{VMAX}, 0xff800000")
    mf = []
    def trreads(x, t, b):
        buf = bufof(x); base = (TRL if buf < 4 else TRH) + b; off = (buf % 4) * 16384 + t * 4096
        return lambda A: [f"ds_read_b64_tr_b16 v[{A}:{A+1}], v{base} offset:{off}", f"ds_read_b64_tr_b16 v[{A+2}:{A+3}], v{base} offset:{off+1024}"]
    def kreads(x, blk, t):
        off = bufof(x) * 16384 + blk * 8192
        return lambda A: [f"ds_read_b128 v[{A}:{A+3}], v{KR+t} offset:{off}"]
    sblk = lambda n: SB + 16 * (n % 3)
    last = {}
    first_use = {}
    for x, (kind, j) in enumerate(slots):
        if kind == 'W':
            order = [(t, b) for t in range(4) for b in range(4)] if j < 9 else [(t, b) for b in range(4) for t in range(4)]
            for t, b in order:
                D = ACC + 16*b; f = 4*j + t
                mf.append(dict(D=D, B=HB + 4*(f % HW), C=('0' if f == 0 else vr(D, 16)), rd=trreads(x, t, b)))
                last[('Q', b)] = len(mf) - 1; last[('h', f)] = len(mf) - 1
        elif kind == 'K':
            for blk in range(2):
                n = 2*j + blk; D = sblk(n)
                for t in range(8):
                    C = vr(D, 16) if t else ('0' if n < 2 else vr(NM, 16))
                    mf.append(dict(D=D, B=QF + 4*t, C=C, rd=kreads(x, blk, t)))
                    first_use.setdefault(('Qf', t), len(mf) - 1); first_use.setdefault(('Sw', n), len(mf) - 1)
                    if n >= 2 and t == 0: first_use.setdefault('NM', len(mf) - 1)
                last[('S', n)] = len(mf) - 1
        else:
            order = [(t, b) for t in range(4) for b in range(4)]
            if j == 7: order = order[:8] + [(t, b) for b in range(4) for t in (2, 3)]
            for t, b in order:
                D = ACC + 16*b
                mf.append(dict(D=D, B=PB + 16*(j % 2) + 4*t, C=('0' if (j == 0 and t == 0) else vr(D, 16)), rd=trreads(x, t, b)))
                first_use.setdefault(('P', j, t), len(mf) - 1); last[('O', b)] = len(mf) - 1
    N = len(mf); assert N == 416
    Q = []; INF = 10**9; side = []
    def q(text, rel, dl=INF, cost=4): Q.append((text, rel, dl, cost))
    for b in range(4):
        r = last[('Q', b)] + 1
        for i1 in range(2):
            t = 2*b + i1; s = ACC + 16*b + 8*i1; dl = first_use[('Qf', t)]
            for e in range(8): q(f"v_mul_f32 v{s+e}, s{sSC}, v{s+e}", r, dl)
            for e in range(4): q(f"v_cvt_pk_bf16_f32 v{QF+4*t+e}, v{s+2*e}, v{s+2*e+1}", r, dl)
    for n in range(16):
        S = sblk(n); r = last[('S', n)] + 1; j = n // 2; P = PB + 16*(j % 2) + 8*(n % 2)
        dlw = first_use.get(('Sw', n+3), INF)
        if n == 0:
            dl = first_use['NM']
            q(f"v_max3_f32 v{T0}, v{S}, v{S+1}, v{S+2}", r, dl); q(f"v_max3_f32 v{T1}, v{S+3}, v{S+4}, v{S+5}", r, dl)
            for e in range(6, 14, 4):
                q(f"v_max3_f32 v{T0}, v{T0}, v{S+e}, v{S+e+1}", r, dl); q(f"v_max3_f32 v{T1}, v{T1}, v{S+e+2}, v{S+e+3}", r, dl)
            q(f"v_max3_f32 v{T0}, v{T0}, v{S+14}, v{S+15}", r, dl)
            q(f"v_max3_f32 v{T0}, v{T0}, v{T1}, v{MFLOOR}", r, dl)
            q(f"v_mov_b32 v{T1}, v{T0}", r, dl)
            q(f"v_permlane32_swap_b32 v{T0}, v{T1}", r, dl)
            q(f"v_max_f32 v{T0}, v{T0}, v{T1}", r, dl)
            q(f"v_cndmask_b32_e64 v{T0}, v{T0}, 0, s[34:35]", r, dl)
            for e in range(16): q(f"v_sub_f32 v{NM+e}, 0, v{T0}", r, dl)
        q(('side', n), r, min(first_use[('P', j, 2*(n % 2))], dlw), 4)
        ops = []
        for i in range(8):
            dl = min(first_use[('P', j, 2*(n % 2) + i // 4)], dlw)
            if n < 2:
                q(f"v_sub_f32 v{S+2*i}, v{S+2*i}, v{T0}", r, dl); q(f"v_sub_f32 v{S+2*i+1}, v{S+2*i+1}, v{T0}", r, dl)
            q(f"v_exp_f32 v{S+2*i}, v{S+2*i}", r, dl, 8); q(f"v_exp_f32 v{S+2*i+1}, v{S+2*i+1}", r, dl, 8)
            if i > 0 and i != 4:
                k = i - 1
                q(f"v_cvt_pk_bf16_f32 v{P+k}, v{S+2*k}, v{S+2*k+1}", r, dl)
                q(f"v_add_f32 v{L0}, v{L0}, v{S+2*k}", r, dl); q(f"v_add_f32 v{L1}, v{L1}, v{S+2*k+1}", r, dl)
            if i in (3, 7):
                q(f"v_add_f32 v{L0}, v{L0}, v{S+2*i}", r, dl)
                q(f"v_cvt_pk_bf16_f32 v{P+i}, v{S+2*i}, v{S+2*i+1}", r, dl)
                q(f"v_add_f32 v{L1}, v{L1}, v{S+2*i+1}", r, dl)
    r = last[('S', 15)] + 1
    ZA, CK = SB, SB + 4
    q(f"v_add_f32 v{L0}, v{L0}, v{L1}", r); q(f"v_mov_b32 v{L1}, v{L0}", r)
    for e in range(4): q(f"v_mov_b32 v{ZA+e}, 0", r)
    q(f"v_permlane32_swap_b32 v{L0}, v{L1}", r); q(f"v_add_f32 v{L0}, v{L0}, v{L1}", r)
    q(f"v_rcp_f32 v{L1}, v{L0}", r, INF, 8)
    q(f"v_cmp_nlt_f32_e64 s[32:33], v{L0}, s36", r)
    for b in range(4):
        r = last[('O', b)] + 1
        for i1 in range(2):
            s = ACC + 16*b + 8*i1; d = QF + 8*b + 4*i1
            for e in range(8): q(f"v_mul_f32 v{s+e}, v{L1}, v{s+e}", r)
            for e in range(4): q(f"v_cvt_pk_bf16_f32 v{d+e}, v{s+2*e}, v{s+2*e+1}", r)
            k = 2*b + i1
            q(f"buffer_store_dwordx4 v[{d}:{d+3}], v{L16}, s[16:19], s{sO if k < 4 else sO2} offen offset:{1024*(k % 4)}", r, INF, 8)
            q(f"v_mfma_f32_16x16x32_bf16 v[{CK}:{CK+3}], v[{ZA}:{ZA+3}], v[{d}:{d+3}], {'0' if k == 0 else vr(CK, 4)}", r, INF, 8)
    a(f"s_mov_b32 s36, {f32(2.0**100)}")
    qi = 0
    def emit_q():
        nonlocal qi
        text = Q[qi][0]; qi += 1
        if isinstance(text, tuple):
            n = text[1]
            a(f"s_cmp_eq_u32 s{sMODE}, 1"); a(f"s_cbranch_scc1 K2_SIDE{n}"); a.label(f"K2_BACK{n}", flush=False)
            side.append(n)
        elif text.startswith("s_nop"): a.nop(int(text.split()[1]) + 1)
        else: a(text)
    issue_at = {}
    occ = {}
    for x in range(len(slots)):
        b = bufof(x)
        if x >= 8: issue_at.setdefault(occ[b] + 1, []).append(x)
        occ[b] = x
    a.wait_tok(('s', 0)); a("s_barrier")
    def reads(m):
        A = AB + 4 * (m % NB)
        for t in mf[m]['rd'](A): a(t)
    for m in range(PF): reads(m)
    pend_dma = []
    log = []
    for m in range(N):
        lastdl = max([i for i in range(qi, len(Q)) if Q[i][2] <= m], default=-1)
        forced = 0
        while qi <= lastdl: emit_q(); forced += 1
        I = mf[m]; A = AB + 4 * (m % NB)
        a(f"v_mfma_f32_32x32x16_bf16 {vr(I['D'],16)}, {vr(A,4)}, {vr(I['B'],4)}, {I['C']}")
        s, p = divmod(m, 16)
        if p == 16 - PF and s + 1 < len(slots):
            a.wait_tok(('s', s + 1)); a("s_barrier")
            for x in issue_at.get(s, []): pend_dma.append(x)
        if m + PF < N: reads(m + PF)
        budget = CAP
        if pend_dma and p in ((17 - PF) % 16, (19 - PF) % 16):
            x = pend_dma[0]
            if isinstance(x, int):
                d = dma(x); a(d[0]); pend_dma[0] = (x, d[1])
            else:
                a(x[1], tok=('s', x[0])); pend_dma.pop(0)
            budget -= 8
        if s < 10 and p % 4 == 3:
            f = 4*s + p // 4 + HW
            if f < 40: hload(f); budget -= 4
        ne = 0
        while qi < len(Q) and Q[qi][1] <= m and budget > 0:
            t = Q[qi][0]
            if isinstance(t, str) and not t.startswith("s_nop") and a.probe(t)[0] > 0: break
            budget -= Q[qi][3]; emit_q(); ne += 1
        log.append((m, forced, ne))
    while qi < len(Q): emit_q()
    a.k2log = log
    a(f"v_cmp_u_f32_e64 s[38:39], v{CK}, v{CK}")
    a("s_or_b64 s[32:33], s[32:33], s[38:39]")
    a("s_cmp_lg_u64 s[32:33], 0"); a("s_cselect_b32 s32, 1, 0")
    a(f"s_lshl_b32 s33, s{sW}, 2"); a(f"s_add_u32 s33, s33, {FLAG}")
    a(f"v_mov_b32 v{T2}, s32"); a(f"v_mov_b32 v{T3}, s33")
    a(f"ds_write_b32 v{T3}, v{T2}")
    a.barrier()
    a(f"s_cmp_eq_u32 s{sMODE}, 2"); a("s_cbranch_scc1 K2_END")
    a(f"s_cmp_eq_u32 s{sMODE}, 1"); a("s_cbranch_scc1 K2_TO2")
    a(f"v_bfe_u32 v{T3}, v{L16}, 2, 5"); a(f"v_add_u32 v{T3}, {FLAG}, v{T3}")
    a(f"ds_read_b32 v{T2}, v{T3}")
    a(f"v_cmp_ne_u32_e64 s[32:33], 0, v{T2}")
    a("s_cmp_eq_u64 s[32:33], 0"); a("s_cbranch_scc1 K2_END")
    a(f"s_mov_b32 s{sMODE}, 1"); a("s_mov_b64 s[34:35], -1")
    a.wait(vm=0); a.flush()
    a("s_branch K2_START")
    a.label("K2_TO2", flush=False)
    a(f"v_mov_b32 v{T1}, v{VMAX}"); a.nop(2)
    a(f"v_permlane32_swap_b32 v{VMAX}, v{T1}"); a(f"v_max_f32 v{MFLOOR}, v{VMAX}, v{T1}")
    a(f"s_mov_b32 s{sMODE}, 2"); a("s_mov_b64 s[34:35], 0")
    a.raw("  s_waitcnt vmcnt(0) lgkmcnt(0)"); a.nop(8)
    a("s_branch K2_START")
    for n in side:
        S = sblk(n)
        a.label(f"K2_SIDE{n}", flush=False); a.hist = []
        a.nop(16)
        for e in range(0, 16, 2): a(f"v_max3_f32 v{VMAX}, v{VMAX}, v{S+e}, v{S+e+1}")
        a.nop(8)
        a(f"s_branch K2_BACK{n}")
    a.label("K2_END", flush=False)
    a("s_endpgm")
    return dict(name="k2_kernel", asm=a, grid=NWG, block=512, lds=131072 + 64, vgprs=256)
```

```python
from common import *
def gen_k35(which, PD=6):
    a = Asm()
    K3 = which == 3
    nm = f"K{which}"
    NKS = 128 if K3 else 54
    CSEG = 512 if K3 else 224
    ACT, WP = (OBUF, WOP) if K3 else (UBUF, W2P)
    NST = 32 if K3 else 14
    MK = 30
    sW, sCT, sTT, sA, sB = 20, 21, 22, 23, 24
    VB, VA0, VA1, VWR, VRD, VE0, VE1, VE2 = 1, 5, 6, 7, 10, 11, 12, 13
    EP = 16
    ACC = 80
    BUF = 160
    a(f"s_cmp_ge_u32 s2, 256"); a(f"s_cbranch_scc1 {nm}_END")
    load_srds(a, [(16, KA_WS), (4, KA_X if K3 else KA_OUT)] + ([] if K3 else [(8, KA_B2)]))
    a(f"s_mov_b32 s{MK}, 0xffff0000")
    a(f"v_readfirstlane_b32 s{sW}, v0"); a(f"s_lshr_b32 s{sW}, s{sW}, 6")
    a(f"s_and_b32 s{sTT}, s2, 7"); a(f"s_lshl_b32 s{sTT}, s{sTT}, 2"); a("s_bfe_u32 s25, s2, 0x20003"); a(f"s_add_u32 s{sTT}, s{sTT}, s25")
    a(f"s_lshr_b32 s{sCT}, s2, 5")
    if K3: a(f"s_lshl_b32 s25, s{sW}, 5")
    else:
        a(f"s_mul_i32 s25, s{sW}, 13"); a(f"s_cmp_ge_u32 s{sW}, 1"); a("s_addc_u32 s25, s25, 0")
    a(f"s_mul_i32 s{sA}, s{sCT}, {NKS}"); a(f"s_add_u32 s{sA}, s{sA}, s25"); a(f"s_mul_i32 s{sA}, s{sA}, 5120"); a(f"s_add_u32 s{sA}, s{sA}, {WP}")
    a(f"s_mul_i32 s{sB}, s{sTT}, {2*CSEG*512}"); a("s_lshl_b32 s26, s25, 11"); a(f"s_add_u32 s{sB}, s{sB}, s26"); a(f"s_add_u32 s{sB}, s{sB}, {ACT}")
    la, g, tk = 14, 15, 16
    a(f"v_and_b32 v{la}, 63, v0"); a(f"v_lshrrev_b32 v{g}, 4, v{la}"); a(f"v_and_b32 v{tk}, 15, v0")
    a(f"v_lshlrev_b32 v{VA0}, 4, v{la}"); a(f"v_add_u32 v{VA1}, 4096, v{VA0}")
    a(f"v_lshlrev_b32 v17, 9, v{g}"); a(f"v_lshl_add_u32 v17, v{tk}, 4, v17")
    for tb in range(4):
        a(f"s_add_u32 s26, s{sW}, {tb}"); a("s_and_b32 s26, s26, 3")
        a("s_lshr_b32 s27, s26, 1"); a(f"s_mul_i32 s27, s27, {CSEG*512}"); a("s_and_b32 s28, s26, 1"); a("s_lshl_b32 s28, s28, 8"); a("s_add_u32 s27, s27, s28")
        a(f"v_add_u32 v{VB+tb}, s27, v17")
        if tb:
            a(f"s_mul_i32 s26, s26, 15360"); a(f"s_add_u32 s26, s26, {5120*(tb-1)}")
            a(f"v_add_u32 v{VWR+tb-1}, s26, v{VA0}")
    if not K3:
        a(f"s_cmp_ge_u32 s{sW}, 2"); a("s_cselect_b32 s26, 0x40000000, 0")
        a(f"v_add_u32 v{VE2}, s26, v{VA0}"); a(f"v_add_u32 v{VE1}, s26, v{VA1}")
    ar = lambda r, n: f"a[{r}:{r+n-1}]"
    def loads(k):
        r = 36 * (k % PD)
        sa, sb = 32 + 2 * (k % 2), 33 + 2 * (k % 2)
        a(f"s_add_u32 s{sa}, s{sA}, {5120*k}"); a(f"s_add_u32 s{sb}, s{sB}, {2048*k}")
        for b in range(5):
            if not K3 and k == 0:
                a(f"buffer_load_dwordx4 a[{r+16+4*b}:{r+19+4*b}], v{VE2 if b < 4 else VE1}, s[16:19], s{sa} offen offset:{1024*(b % 4)}")
            else:
                a(f"buffer_load_dwordx4 a[{r+16+4*b}:{r+19+4*b}], v{VA0 if b < 4 else VA1}, s[16:19], s{sa} offen offset:{1024*(b % 4)}")
            if b < 4: a(f"buffer_load_dwordx4 a[{r+4*b}:{r+4*b+3}], v{VB+b}, s[16:19], s{sb} offen")
    for k in range(min(PD, NST)): loads(k)
    a(f"s_mul_i32 s26, s{sW}, 15360"); a(f"v_add_u32 v{VRD}, s26, v{VA0}")
    a(f"s_lshl_b32 s26, s{sTT}, 6"); a(f"s_lshl_b32 s27, s{sW}, 4"); a("s_add_u32 s26, s26, s27")
    a(f"s_mul_i32 s27, s{sCT}, 160")
    a("s_mul_i32 s36, s26, 1280"); a("s_add_u32 s36, s36, s27")
    a("s_lshr_b32 s28, s26, 5"); a("s_mul_i32 s28, s28, 40960"); a(f"s_mul_i32 s29, s{sCT}, 5120"); a("s_add_u32 s28, s28, s29")
    a("s_and_b32 s29, s26, 16"); a("s_lshl_b32 s29, s29, 4"); a("s_add_u32 s28, s28, s29")
    a(f"s_add_u32 s37, s28, {X1B}"); a(f"s_add_u32 s38, s28, {Y2B}")
    a(f"s_mul_i32 s39, s{sCT}, 320")
    RM0, RM4, FR0, FR4, MF0, MF4 = 17, 18, 19, 20, 21, 22
    a(f"v_mul_u32_u24 v{RM4}, 1280, v{tk}"); a(f"v_lshl_add_u32 v{RM0}, v{g}, 4, v{RM4}"); a(f"v_lshl_add_u32 v{RM4}, v{g}, 3, v{RM4}")
    a(f"v_lshlrev_b32 v{FR0}, 9, v{g}"); a(f"v_lshl_add_u32 v{FR0}, v{tk}, 4, v{FR0}")
    a(f"v_lshrrev_b32 v{FR4}, 1, v{g}"); a(f"v_lshlrev_b32 v{FR4}, 9, v{FR4}"); a(f"v_lshl_add_u32 v{FR4}, v{tk}, 4, v{FR4}")
    a(f"v_and_b32 v23, 1, v{g}"); a(f"v_lshl_add_u32 v{FR4}, v23, 3, v{FR4}"); a(f"v_add_u32 v{FR4}, 4096, v{FR4}")
    a(f"v_lshlrev_b32 v{MF0}, 5, v{g}"); a(f"v_lshlrev_b32 v{MF4}, 4, v{g}")
    XI, G1, G2 = 24, 36, 56
    def eploads():
        if K3:
            a(f"buffer_load_dwordx4 v[{XI}:{XI+3}], v{RM0}, s[4:7], s36 offen"); a(f"buffer_load_dwordx4 v[{XI+4}:{XI+7}], v{RM0}, s[4:7], s36 offen offset:64")
            a(f"buffer_load_dwordx2 v[{XI+8}:{XI+9}], v{RM4}, s[4:7], s36 offen offset:128")
        else:
            a(f"buffer_load_dwordx4 v[{XI}:{XI+3}], v{FR0}, s[16:19], s37 offen"); a(f"buffer_load_dwordx4 v[{XI+4}:{XI+7}], v{FR0}, s[16:19], s37 offen offset:2048")
            a(f"buffer_load_dwordx2 v[{XI+8}:{XI+9}], v{FR4}, s[16:19], s37 offen")
        for G, sec in ([(G1, 2), (G2, 4)] if K3 else [(G1, 5)]):
            a(f"s_add_u32 s40, s39, {MODF + 2560*sec}")
            for i, off in enumerate((0, 16, 128, 144)): a(f"buffer_load_dwordx4 v[{G+4*i}:{G+4*i+3}], v{MF0}, s[16:19], s40 offen offset:{off}")
            a(f"buffer_load_dwordx4 v[{G+16}:{G+19}], v{MF4}, s[16:19], s40 offen offset:256")
        if not K3:
            a(f"v_lshlrev_b32 v23, 3, v{g}")
            a(f"buffer_load_dwordx4 v[{G2}:{G2+3}], v{MF4}, s[8:11], s27 offen"); a(f"buffer_load_dwordx4 v[{G2+4}:{G2+7}], v{MF4}, s[8:11], s27 offen offset:64")
            a(f"buffer_load_dwordx2 v[{G2+8}:{G2+9}], v23, s[8:11], s27 offen offset:128")
    acc = lambda tb, b: ACC + 4 * (5 * tb + b)
    for k in range(NST):
        r = 36 * (k % PD)
        order = [(tb, b) for b in range(5) for tb in range(4)]
        if k == NST - 1: order = [(tb, b) for tb in (1, 2, 3, 0) for b in range(5)]
        for i, (tb, b) in enumerate(order):
            D = vr(acc(tb, b), 4)
            a(f"v_mfma_f32_16x16x32_bf16 {D}, {ar(r+16+4*b,4)}, {ar(r+4*tb,4)}, {'0' if k == 0 else D}")
            if k == NST - 1 and i >= 7 and i < 22 and i - 7 < 15:
                j = i - 7; tb2, b2 = 1 + j // 5, j % 5
                a(f"ds_write_b128 v{VWR+tb2-1}, {vr(acc(tb2, b2), 4)} offset:{1024*b2}")
        if k + PD < NST: loads(k + PD)
        if k == max(0, NST - PD - 1): eploads()
    for j in (13, 14): a(f"ds_write_b128 v{VWR+2}, {vr(acc(3, j % 5), 4)} offset:{1024*(j % 5)}")
    a.barrier()
    R = BUF
    for i in range(3):
        for b in range(5): a(f"ds_read_b128 {vr(R+20*i+4*b, 4)}, v{VRD} offset:{5120*i+1024*b}")
    for i in range(3):
        for e in range(20): a(f"v_add_f32 v{ACC+e}, v{ACC+e}, v{R+20*i+e}")
    T, U, W = 100, 120, 140
    S1, S2 = 150, 151
    for i in range(10):
        x, y = ACC + 2*i, ACC + 2*i + 1
        rnd2(a, x, y, T, MK)
        if not K3:
            unpack2(a, U, U+1, G2+i, MK)
            a(f"v_add_f32 v{x}, v{x}, v{U}"); a(f"v_add_f32 v{y}, v{y}, v{U+1}")
            rnd2(a, x, y, T, MK)
        a(f"v_mul_f32 v{x}, v{x}, v{G1+2*i}"); a(f"v_mul_f32 v{y}, v{y}, v{G1+2*i+1}")
        rnd2(a, x, y, T, MK)
        unpack2(a, U, U+1, XI+i, MK)
        a(f"v_add_f32 v{x}, v{x}, v{U}"); a(f"v_add_f32 v{y}, v{y}, v{U+1}")
        if K3:
            rnd2(a, x, y, T+2+i, MK)
            if i == 0:
                a(f"v_add_f32 v{S1}, v{x}, v{y}"); a(f"v_mul_f32 v{S2}, v{x}, v{x}")
            else:
                a(f"v_add_f32 v{S1}, v{S1}, v{x}"); a(f"v_fmac_f32 v{S2}, v{x}, v{x}"); a(f"v_add_f32 v{S1}, v{S1}, v{y}")
            a(f"v_fmac_f32 v{S2}, v{y}, v{y}")
            a(f"v_mul_f32 v{x}, v{x}, v{G2+2*i}"); a(f"v_mul_f32 v{y}, v{y}, v{G2+2*i+1}")
            a(f"v_cvt_pk_bf16_f32 v{W+i}, v{x}, v{y}")
        else:
            a(f"v_cvt_pk_bf16_f32 v{T+2+i}, v{x}, v{y}")
    P = T + 2
    if K3:
        for base, so in ((W, 38), (P, 37)):
            a(f"buffer_store_dwordx4 {vr(base,4)}, v{FR0}, s[16:19], s{so} offen"); a(f"buffer_store_dwordx4 {vr(base+4,4)}, v{FR0}, s[16:19], s{so} offen offset:2048")
            a(f"buffer_store_dwordx2 {vr(base+8,2)}, v{FR4}, s[16:19], s{so} offen")
        for w in (16, 32):
            xsum_swap(a, S1, U, w); xsum_swap(a, S2, U+1, w)
        a(f"v_lshlrev_b32 v{U}, 3, v{tk}")
        a(f"s_lshl_b32 s26, s{sTT}, 9"); a(f"s_lshl_b32 s27, s{sW}, 7"); a("s_add_u32 s26, s26, s27"); a(f"s_lshl_b32 s27, s{sCT}, 14"); a("s_add_u32 s26, s26, s27")
        a(f"s_add_u32 s26, s26, {STAT}")
        a(f"buffer_store_dwordx2 v[{S1}:{S2}], v{U}, s[16:19], s26 offen")
    else:
        a(f"buffer_store_dwordx4 {vr(P,4)}, v{RM0}, s[4:7], s36 offen"); a(f"buffer_store_dwordx4 {vr(P+4,4)}, v{RM0}, s[4:7], s36 offen offset:64")
        a(f"buffer_store_dwordx2 {vr(P+8,2)}, v{RM4}, s[4:7], s36 offen offset:128")
    a.label(f"{nm}_END", flush=False)
    a("s_endpgm")
    return dict(name=f"k{which}_kernel", asm=a, grid=256, block=256, lds=61440, vgprs=224 + 36 * PD, accum=224)
```

```python
from common import *
def gen_k4(PFA=4):
    a = Asm()
    MK = 30
    sW, sCT, sTT, sA, sB, sM0 = 20, 21, 22, 23, 24, 25
    L16, VB, VT = 1, 2, 3
    TL = 143360
    ACC = 32
    AB = 88
    NBA = 8
    EP = 120
    a("s_cmp_ge_u32 s2, 256"); a("s_cbranch_scc1 K4_END")
    load_srds(a, [(16, KA_WS), (8, KA_B1)])
    a(f"s_mov_b32 s{MK}, 0xffff0000")
    a(f"v_readfirstlane_b32 s{sW}, v0"); a(f"s_lshr_b32 s{sW}, s{sW}, 6")
    a(f"s_and_b32 s{sTT}, s2, 7"); a(f"s_lshl_b32 s{sTT}, s{sTT}, 1"); a("s_bfe_u32 s26, s2, 0x10003"); a(f"s_add_u32 s{sTT}, s{sTT}, s26")
    a(f"s_lshr_b32 s{sCT}, s2, 4")
    a(f"s_mul_i32 s{sA}, s{sCT}, 143360"); a(f"s_add_u32 s{sA}, s{sA}, {W1P}")
    a(f"s_mul_i32 s{sM0}, s{sW}, 7168"); a(f"s_add_u32 s{sA}, s{sA}, s{sM0}")
    a(f"s_lshl_b32 s26, s{sTT}, 2"); a(f"s_add_u32 s26, s26, s{sW}")
    a(f"s_mul_i32 s{sB}, s26, 40960"); a(f"s_add_u32 s{sB}, s{sB}, {Y2B}")
    la, g, tk = 4, 5, 6
    a(f"v_and_b32 v{la}, 63, v0"); a(f"v_lshrrev_b32 v{g}, 4, v{la}"); a(f"v_and_b32 v{tk}, 15, v0")
    a(f"v_lshlrev_b32 v{L16}, 4, v{la}")
    a(f"v_lshlrev_b32 v{VB}, 9, v{g}"); a(f"v_lshl_add_u32 v{VB}, v{tk}, 4, v{VB}")
    ar = lambda r, n: f"a[{r}:{r+n-1}]"
    def chunk(c):
        for h in range(2):
            a(f"s_add_u32 s27, s{sA}, {28672*c + 4096*h}"); a(f"s_add_u32 m0, s{sM0}, {28672*c + 4096*h}")
            for i in range(4 if h == 0 else 3):
                a(f"buffer_load_dwordx4 v{L16}, s[16:19], s27 offen offset:{1024*i} lds", tok=('c', c))
    def bl(ks):
        if ks % 2 == 0: a(f"s_add_u32 s28, s{sB}, {2048*ks}")
        for tb in range(2): a(f"buffer_load_dwordx4 {ar(8*ks+4*tb, 4)}, v{VB}, s[16:19], s28 offen offset:{2048*(ks % 2) + 256*tb}")
    chunk(0)
    for ks in range(4): bl(ks)
    chunk(1)
    for ks in range(4, 8): bl(ks)
    a("v_cmp_lt_u32 vcc, 111, v0"); a(f"v_cndmask_b32 v7, 0, v0, vcc"); a(f"v_mov_b32 v8, {7168-448}"); a("v_cndmask_b32 v7, 0, v8, vcc")
    a("v_lshl_add_u32 v7, v0, 2, v7")
    a("v_cmp_lt_u32 vcc, 223, v0"); a("v_mov_b32 v8, 0x40000000"); a("v_cndmask_b32 v7, v7, v8, vcc")
    a(f"s_mul_i32 s29, s{sCT}, 448"); a(f"s_add_u32 s29, s29, {T12P}")
    for i in range(20):
        if i: a("s_add_u32 s29, s29, 14336")
        a(f"buffer_load_dword v{EP+i}, v7, s[16:19], s29 offen")
    chunk(2)
    for i in range(1, 20): a(f"v_add_f32 v{EP}, v{EP}, v{EP+i}")
    a(f"v_lshlrev_b32 v8, 2, v0"); a(f"ds_write_b32 v8, v{EP} offset:{TL - 131072}") if False else None
    a(f"v_lshlrev_b32 v8, 2, v0"); a(f"v_add_u32 v8, {TL}, v8"); a(f"ds_write_b32 v8, v{EP}")
    for ks in range(8, 12): bl(ks)
    chunk(3)
    for ks in range(12, 16): bl(ks)
    chunk(4)
    for ks in range(16, 20): bl(ks)
    ST = EP + 20
    a(f"v_lshlrev_b32 v9, 15, v{g}"); a(f"v_lshl_add_u32 v9, v{tk}, 3, v9")
    a("s_lshl_b32 s29, s26, 8"); a(f"s_add_u32 s29, s29, {STAT}"); a("s_add_u32 s31, s29, 16384")
    for tb in range(2):
        a(f"buffer_load_dwordx2 {vr(ST+4*tb, 2)}, v9, s[16:19], s29 offen offset:{128*tb}")
        a(f"buffer_load_dwordx2 {vr(ST+4*tb+2, 2)}, v9, s[16:19], s31 offen offset:{128*tb}")
    B1 = ST + 8
    a(f"v_lshlrev_b32 v10, 4, v{g}"); a(f"v_lshlrev_b32 v11, 3, v{g}")
    a(f"s_mul_i32 s29, s{sCT}, 224"); a("v_add_u32 v10, s29, v10"); a("v_add_u32 v11, s29, v11")
    for p in range(3): a(f"buffer_load_dwordx4 {vr(B1+4*p, 4)}, v10, s[8:11], 0 offen offset:{64*p}")
    a(f"buffer_load_dwordx2 {vr(B1+12, 2)}, v11, s[8:11], 0 offen offset:192")
    a(f"v_add_u32 v12, 0x10000, v{L16}"); a(f"v_add_u32 v13, 0x20000, v{L16}")
    seq = [(ks, b) for ks in range(20) for b in range(7)]
    def rd(i):
        ks, b = seq[i]; off = ks * 7168 + b * 1024
        base = (L16, 12, 13)[off >> 16]
        a(f"ds_read_b128 {vr(AB + 4*(i % NBA), 4)}, v{base} offset:{off & 0xffff}")
    acc = lambda tb, b: ACC + 4 * (7 * tb + b)
    a.wait_tok(('c', 0)); a.barrier()
    for i in range(PFA): rd(i)
    for i, (ks, b) in enumerate(seq):
        for tb in range(2):
            D = vr(acc(tb, b), 4)
            a(f"v_mfma_f32_16x16x32_bf16 {D}, {vr(AB + 4*(i % NBA), 4)}, {ar(8*ks+4*tb, 4)}, {'0' if ks == 0 else D}")
            if tb == 0:
                n = i + PFA
                if n < len(seq):
                    if n % 28 == 0: a.wait_tok(('c', n // 28)); a("s_barrier")
                    rd(n)
    T1, T2 = 164, 192
    a(f"v_lshlrev_b32 v10, 5, v{g}"); a(f"v_add_u32 v10, {TL}, v10"); a(f"v_lshlrev_b32 v11, 4, v{g}"); a(f"v_add_u32 v11, {TL}, v11")
    for T, o in ((T1, 0), (T2, 448)):
        for b in range(6): a(f"ds_read_b128 {vr(T+4*b, 4)}, v10 offset:{o + 128*(b >> 1) + 16*(b & 1)}")
        a(f"ds_read_b128 {vr(T+24, 4)}, v11 offset:{o + 384}")
    MU, RS = 14, 16
    for tb in range(2):
        s1, s2 = ST + 4*tb, ST + 4*tb + 1
        a(f"v_add_f32 v{s1}, v{s1}, v{s1+2}"); a(f"v_add_f32 v{s2}, v{s2}, v{s2+2}")
        for w in (16, 32): xsum_swap(a, s1, 18, w); xsum_swap(a, s2, 19, w)
        a(f"v_mul_f32 v{s1}, {f32(1/640)}, v{s1}"); a(f"v_mul_f32 v{s2}, {f32(1/640)}, v{s2}")
        a(f"v_fma_f32 v{s2}, -v{s1}, v{s1}, v{s2}"); a(f"v_max_f32 v{s2}, 0, v{s2}")
        rnd2(a, s1, s2, 18, MK)
        a(f"v_add_f32 v{s2}, {f32(1e-5)}, v{s2}"); rnd1(a, s2)
        a(f"v_sqrt_f32 v{s2}, v{s2}"); rnd1(a, s2)
        a(f"v_rcp_f32 v{RS+tb}, v{s2}"); a(f"v_sub_f32 v{MU+tb}, 0, v{s1}")
    BF = 220
    for i in range(14): unpack2(a, BF+2*i, BF+2*i+1, B1+i, MK)
    a(f"v_lshrrev_b32 v18, 1, v{g}"); a("v_lshlrev_b32 v18, 9, v18"); a(f"v_lshl_add_u32 v18, v{tk}, 4, v18"); a(f"v_and_b32 v19, 1, v{g}"); a("v_lshl_add_u32 v18, v19, 3, v18")
    a(f"s_mul_i32 s27, s26, {224*512}"); a(f"s_mul_i32 s28, s{sCT}, 7168"); a("s_add_u32 s27, s27, s28"); a(f"s_add_u32 s27, s27, {UBUF}")
    a("s_add_u32 s28, s27, 4096"); a("s_add_u32 s29, s27, 6144")
    PK = AB
    for tb in range(2):
        for i in range(14):
            x, y = acc(tb, 0) + 2*i, acc(tb, 0) + 2*i + 1
            a(f"v_fmac_f32 v{x}, v{MU+tb}, v{T1+2*i}"); a(f"v_fmac_f32 v{y}, v{MU+tb}, v{T1+2*i+1}")
            a(f"v_fma_f32 v{x}, v{x}, v{RS+tb}, v{T2+2*i}"); a(f"v_fma_f32 v{y}, v{y}, v{RS+tb}, v{T2+2*i+1}")
            rnd2(a, x, y, 19, MK)
            a(f"v_add_f32 v{x}, v{x}, v{BF+2*i}"); a(f"v_add_f32 v{y}, v{y}, v{BF+2*i+1}")
            rnd2(a, x, y, 19, MK)
            a(f"v_max_f32 v{x}, 0, v{x}"); a(f"v_max_f32 v{y}, 0, v{y}")
            a(f"v_mul_f32 v{x}, v{x}, v{x}"); a(f"v_mul_f32 v{y}, v{y}, v{y}")
            d = PK + 16*tb + i
            a(f"v_cvt_pk_bf16_f32 v{d}, v{x}, v{y}")
            if i in (3, 7): a(f"buffer_store_dwordx4 {vr(d-3, 4)}, v{VB}, s[16:19], s27 offen offset:{2048*(i // 4) + 256*tb}")
            if i == 11: a(f"buffer_store_dwordx4 {vr(d-3, 4)}, v{VB}, s[16:19], s28 offen offset:{256*tb}")
            if i == 13: a(f"buffer_store_dwordx2 {vr(d-1, 2)}, v18, s[16:19], s29 offen offset:{256*tb}")
    a.label("K4_END", flush=False)
    a("s_endpgm")
    return dict(name="k4_kernel", asm=a, grid=256, block=256, lds=143360 + 1024, vgprs=256 + 160, accum=256)
```

```python
from common import *
def gen_ka():
    a = Asm()
    NG, NL = 120, 64
    a(f"s_cmp_ge_u32 s2, {NG+NL}"); a("s_cbranch_scc1 KA_END")
    MK = 30
    a(f"s_mov_b32 s{MK}, 0xffff0000")
    a(f"s_cmp_ge_u32 s2, {NG}"); a("s_cbranch_scc1 KA_LN")
    load_srds(a, [(4, KA_C), (8, KA_WMOD), (12, KA_WS)])
    a("v_lshrrev_b32 v1, 2, v0")
    a("v_and_b32 v2, 3, v0")
    a("v_mul_u32_u24 v3, 10, v1")
    a("v_mul_u32_u24 v4, 38400, v1")
    a("v_lshl_add_u32 v4, v2, 4, v4")
    a("s_lshl_b32 s16, s2, 6")
    for i in range(1, 5): a(f"s_add_u32 s{16+i}, s16, {7680*i}")
    for i in range(5): a(f"buffer_load_ushort v{10+i}, v3, s[4:7], 0 offen offset:{2*i}")
    for i in range(5): a(f"buffer_load_dwordx4 v[{16+4*i}:{19+4*i}], v4, s[8:11], s{16+i} offen")
    for i in range(5):
        x, e = 10+i, 40+i
        a(f"v_lshlrev_b32 v{x}, 16, v{x}")
        a(f"v_mul_f32 v{e}, {f32(-LOG2E)}, v{x}")
        a(f"v_exp_f32 v{e}, v{e}")
        a(f"v_add_f32 v{e}, 1.0, v{e}")
        a(f"v_rcp_f32 v{e}, v{e}")
        a(f"v_mul_f32 v{x}, v{x}, v{e}")
        rnd1(a, x)
    ACC = 48
    for i in range(5):
        for j in range(4):
            unpack2(a, 56, 57, 16+4*i+j, MK)
            if i == 0:
                a(f"v_mul_f32 v{ACC+2*j}, v56, v10"); a(f"v_mul_f32 v{ACC+2*j+1}, v57, v10")
            else:
                a(f"v_fmac_f32 v{ACC+2*j}, v56, v{10+i}"); a(f"v_fmac_f32 v{ACC+2*j+1}, v57, v{10+i}")
    for sh in (8, 4):
        for j in range(8): a(f"v_add_f32_dpp v{ACC+j}, v{ACC+j}, v{ACC+j} row_ror:{sh} row_mask:0xf bank_mask:0xf")
    a("v_lshrrev_b32 v5, 4, v0"); a("v_lshlrev_b32 v5, 7, v5"); a("v_lshl_add_u32 v5, v2, 5, v5")
    a(f"ds_write_b128 v5, v[{ACC}:{ACC+3}]"); a(f"ds_write_b128 v5, v[{ACC+4}:{ACC+7}] offset:16")
    a.barrier()
    a("v_readfirstlane_b32 s22, v0"); a("s_cmp_ge_u32 s22, 64"); a("s_cbranch_scc1 KA_END")
    a("v_and_b32 v6, 31, v0"); a("v_lshrrev_b32 v7, 5, v0"); a("v_lshlrev_b32 v7, 11, v7"); a("v_lshl_add_u32 v7, v6, 2, v7")
    for j in range(16): a(f"ds_read_b32 v{16+j}, v7 offset:{128*j}")
    for j in range(1, 16): a(f"v_add_f32 v16, v16, v{16+j}")
    xsum_swap(a, 16, 17, 32)
    rnd1(a, 16)
    a("s_mov_b32 s23, 0")
    a("s_sub_u32 s24, s2, 20"); a("s_cmp_lt_u32 s24, 20"); a("s_cselect_b32 s23, 1.0, s23")
    a("s_sub_u32 s24, s2, 80"); a("s_cmp_lt_u32 s24, 20"); a("s_cselect_b32 s23, 1.0, s23")
    a("v_add_f32 v16, s23, v16")
    a("v_cvt_pk_bf16_f32 v17, v16, v16"); a("v_lshlrev_b32 v16, 16, v17")
    a("v_lshlrev_b32 v8, 2, v6"); a("v_lshlrev_b32 v9, 1, v6")
    a("s_lshl_b32 s24, s2, 7"); a(f"s_add_u32 s25, s16, {MODB}")
    a("buffer_store_dword v16, v8, s[12:15], s24 offen")
    a("buffer_store_short v17, v9, s[12:15], s25 offen")
    a("s_endpgm")
    a.label("KA_LN", flush=False); a.hist = []; a.pend = {}; a.vm_done = a.vm_n; a.lg_done = a.lg_n; a.smem_out = False
    load_srds(a, [(4, KA_X), (12, KA_WS)])
    a(f"s_sub_u32 s16, s2, {NG}")
    a("v_and_b32 v1, 3, v0"); a("v_lshrrev_b32 v2, 6, v0"); a("v_lshl_add_u32 v1, v2, 2, v1")
    a("v_bfe_u32 v2, v0, 2, 4")
    a("v_mul_u32_u24 v3, 1280, v1"); a("v_lshl_add_u32 v3, v2, 4, v3")
    a("s_mul_i32 s17, s16, 40960")
    for i in range(5): a(f"buffer_load_dwordx4 v[{8+4*i}:{11+4*i}], v3, s[4:7], s17 offen offset:{256*i}")
    a("v_lshlrev_b32 v4, 9, v2"); a("v_lshl_add_u32 v4, v1, 4, v4")
    a(f"s_add_u32 s18, s17, {NBUF}")
    for i in range(1, 5): a(f"s_add_u32 s{18+i}, s18, {8192*i}")
    X = 32
    for i in range(20): unpack2(a, X+2*i, X+2*i+1, 8+i, MK)
    a(f"v_add_f32 v5, v{X}, v{X+1}"); a(f"v_add_f32 v6, v{X+2}, v{X+3}")
    for i in range(4, 40, 2): a(f"v_add_f32 v5, v5, v{X+i}"); a(f"v_add_f32 v6, v6, v{X+i+1}")
    a("v_add_f32 v5, v5, v6")
    def allred(r):
        for sh in (8, 4): a(f"v_add_f32_dpp v{r}, v{r}, v{r} row_ror:{sh} row_mask:0xf bank_mask:0xf")
        xsum_swap(a, r, 7, 16); xsum_swap(a, r, 7, 32)
    allred(5)
    a(f"v_mul_f32 v5, {f32(1/640)}, v5")
    a("v_mov_b32 v6, 0"); a("v_mov_b32 v30, 0")
    for i in range(0, 40, 2):
        a(f"v_sub_f32 v28, v{X+i}, v5"); a(f"v_sub_f32 v29, v{X+i+1}, v5")
        a("v_fmac_f32 v6, v28, v28"); a("v_fmac_f32 v30, v29, v29")
    a("v_add_f32 v6, v6, v30")
    allred(6)
    a(f"v_mul_f32 v6, {f32(1/640)}, v6")
    rnd2(a, 5, 6, 7, MK)
    a(f"v_add_f32 v6, {f32(1e-5)}, v6"); rnd1(a, 6)
    a("v_sqrt_f32 v6, v6"); rnd1(a, 6)
    a("v_rcp_f32 v6, v6")
    for i in range(20):
        x, y = X+2*i, X+2*i+1
        a(f"v_sub_f32 v{x}, v{x}, v5"); a(f"v_sub_f32 v{y}, v{y}, v5")
        rnd2(a, x, y, 28, MK)
        a(f"v_mul_f32 v{x}, v{x}, v6"); a(f"v_mul_f32 v{y}, v{y}, v6")
        a(f"v_cvt_pk_bf16_f32 v{8+i}, v{x}, v{y}")
        if i % 4 == 3: a(f"buffer_store_dwordx4 v[{8+i-3}:{8+i}], v4, s[12:15], s{18+i//4} offen")
    a.label("KA_END", flush=False)
    a("s_endpgm")
    return dict(name="ka_kernel", asm=a, grid=NG+NL, block=512, lds=4096, vgprs=80)
```

```python
from common import *
def reset(a):
    a.hist = []; a.pend = {}; a.vm_done = a.vm_n; a.lg_done = a.lg_n; a.smem_out = False
def gen_kb():
    a = Asm()
    NR, NM = 242, 320
    MK = 30
    a(f"s_cmp_ge_u32 s2, {NR+NM}"); a("s_cbranch_scc1 KB_END")
    a(f"s_mov_b32 s{MK}, 0xffff0000")
    load_srds(a, [(12, KA_WS)])
    a(f"s_cmp_ge_u32 s2, {NR}"); a("s_cbranch_scc1 KB_MOD")
    a("v_readfirstlane_b32 s22, v0"); a("s_lshr_b32 s22, s22, 6")
    a("s_cmp_ge_u32 s2, 182"); a("s_cbranch_scc1 KB_W1")
    a("s_cmp_ge_u32 s2, 128"); a("s_cbranch_scc1 KB_W2")
    load_srds(a, [(4, KA_WO)])
    a("s_mul_i32 s16, s2, 40960"); a("s_mul_i32 s18, s2, 5120"); a(f"s_mul_i32 s23, s22, {128*5120}")
    a(f"s_add_u32 s18, s18, {WOP}")
    a("s_branch KB_P5")
    a.label("KB_W2", flush=False)
    load_srds(a, [(4, KA_W2)])
    a("s_sub_u32 s24, s2, 128")
    a("s_mul_i32 s16, s24, 40960"); a("s_mul_i32 s18, s24, 5120"); a(f"s_mul_i32 s23, s22, {54*5120}")
    a(f"s_add_u32 s18, s18, {W2P}")
    a.label("KB_P5", flush=False)
    a("s_add_u32 s18, s18, s23"); a("s_mov_b32 s17, -64"); a("s_mul_i32 s19, s22, 160"); a("s_mov_b32 s20, 0"); a("s_mov_b32 s21, 8")
    a("s_branch KB_DMA")
    a.label("KB_W1", flush=False)
    load_srds(a, [(4, KA_W1)])
    a("s_sub_u32 s24, s2, 182")
    a("s_mov_b32 s25, 0"); a("s_mov_b32 s21, 6")
    a("s_cmp_ge_u32 s24, 20"); a("s_cselect_b32 s25, 6, s25"); a("s_cselect_b32 s21, 5, s21"); a("s_cselect_b32 s26, 20, 0")
    a("s_cmp_ge_u32 s24, 40"); a("s_cselect_b32 s25, 11, s25"); a("s_cselect_b32 s26, 40, s26")
    a("s_sub_u32 s24, s24, s26")
    a(f"s_mul_i32 s16, s24, {32*3456}"); a("s_mul_i32 s26, s25, 224"); a("s_add_u32 s16, s16, s26")
    a("s_add_u32 s25, s25, s22")
    a("s_mul_i32 s18, s25, 20"); a("s_add_u32 s18, s18, s24"); a("s_mul_i32 s18, s18, 7168"); a(f"s_add_u32 s18, s18, {W1P}")
    a(f"s_mov_b32 s17, {3456-1344}"); a("s_mul_i32 s19, s22, 224"); a("s_mov_b32 s20, 1")
    a("s_mul_i32 s27, s24, 14336"); a("s_mul_i32 s26, s25, 448"); a("s_add_u32 s27, s27, s26"); a(f"s_add_u32 s27, s27, {T12P}")
    a("s_lshl_b32 s28, s24, 6"); a(f"s_add_u32 s28, s28, {MODB}")
    a.label("KB_DMA", flush=False)
    a.smem_out = True
    a.wait(lg=0)
    a("s_lshl_b32 s23, s22, 10")
    for j in range(6):
        a(f"v_add_u32 v1, {512*j}, v0")
        a("v_mul_u32_u24 v2, 3121, v1"); a("v_lshrrev_b32 v2, 18, v2")
        a("v_lshlrev_b32 v1, 4, v1")
        a(f"v_mad_i32_i24 v{10+j}, v2, s17, v1")
        a(f"v_add_u32 v{10+j}, s16, v{10+j}")
        a(f"s_add_u32 m0, s23, {8192*j}")
        a(f"buffer_load_dwordx4 v{10+j}, s[4:7], 0 offen lds")
    a("v_and_b32 v1, 63, v0")
    a("v_lshrrev_b32 v2, 4, v1"); a("v_bfe_u32 v3, v0, 2, 2"); a("v_and_b32 v4, 3, v0")
    a("v_lshl_add_u32 v3, v2, 3, v3"); a("v_mul_u32_u24 v3, 1344, v3"); a("v_add_u32 v3, s19, v3")
    a("v_lshl_add_u32 v5, v4, 4, v3"); a("v_lshl_add_u32 v6, v4, 3, v3")
    a("v_lshlrev_b32 v7, 4, v1")
    a("s_add_u32 s24, s18, 4096")
    a("s_cmp_eq_u32 s20, 1"); a("s_cbranch_scc1 KB_R1")
    st = (a.hist[:], dict(a.pend), a.vm_n, a.vm_done, a.lg_n, a.lg_done)
    a.barrier(vm=0)
    def blocks(nb):
        for b in range(nb):
            va, off = (5, 64*(b >> 1) + 8*(b & 1)) if b < nb-1 else (6, 64*(nb >> 1))
            a(f"ds_read_b64_tr_b16 v[{16+4*b}:{17+4*b}], v{va} offset:{off}")
            a(f"ds_read_b64_tr_b16 v[{18+4*b}:{19+4*b}], v{va} offset:{off+5376}")
        for b in range(nb):
            a(f"buffer_store_dwordx4 v[{16+4*b}:{19+4*b}], v7, s[12:15], s{18 if b < 4 else 24} offen offset:{1024*(b & 3)}")
    blocks(5)
    a("s_endpgm")
    a.label("KB_R1", flush=False)
    a.hist, a.pend, a.vm_n, a.vm_done, a.lg_n, a.lg_done = st
    a("v_and_b32 v8, 1, v0"); a("v_mul_u32_u24 v9, 1280, v8"); a("v_sub_u32 v9, 5120, v9"); a("v_lshl_add_u32 v9, v2, 4, v9")
    a("buffer_load_dwordx4 v[48:51], v9, s[12:15], s28 offen")
    a("v_and_b32 v8, 15, v0"); a("v_mul_u32_u24 v9, 7168, v8")
    a("v_lshl_add_u32 v10, v2, 5, v9"); a("v_lshl_add_u32 v11, v2, 4, v9")
    a.barrier(vm=0)
    a("s_cmp_ge_u32 s22, s21"); a("s_cbranch_scc1 KB_END")
    blocks(7)
    for b in range(7): a(f"v_mfma_f32_16x16x32_bf16 v[{52+4*b}:{55+4*b}], v[{16+4*b}:{19+4*b}], v[48:51], 0")
    a("v_cmp_gt_u32 vcc, 2, v8"); a("s_and_b64 exec, exec, vcc")
    for b in range(7):
        if b < 6: a(f"buffer_store_dwordx4 v[{52+4*b}:{55+4*b}], v10, s[12:15], s27 offen offset:{128*(b >> 1)+16*(b & 1)}")
        else: a(f"buffer_store_dwordx4 v[{52+4*b}:{55+4*b}], v11, s[12:15], s27 offen offset:384")
    a("s_endpgm")
    a.label("KB_MOD", flush=False); reset(a); a.smem_out = True; a.wait(lg=0)
    a(f"s_sub_u32 s16, s2, {NR}")
    a("s_mul_i32 s17, s16, 52429"); a("s_lshr_b32 s17, s17, 18"); a("s_mul_i32 s17, s17, 5"); a("s_sub_u32 s17, s16, s17"); a("s_lshl_b32 s17, s17, 9")
    a("s_lshl_b32 s16, s16, 13"); a(f"s_add_u32 s18, s16, {NBUF}"); a(f"s_add_u32 s19, s16, {HBUF}")
    a("v_lshlrev_b32 v1, 4, v0"); a("v_lshrrev_b32 v2, 5, v0"); a("v_lshlrev_b32 v2, 5, v2")
    a("buffer_load_dwordx4 v[4:7], v1, s[12:15], s18 offen")
    a("buffer_load_dwordx4 v[8:11], v2, s[12:15], s17 offen offset:2560"); a("buffer_load_dwordx4 v[12:15], v2, s[12:15], s17 offen offset:2576")
    a("buffer_load_dwordx4 v[16:19], v2, s[12:15], s17 offen"); a("buffer_load_dwordx4 v[20:23], v2, s[12:15], s17 offen offset:16")
    for j in range(4):
        unpack2(a, 24, 25, 4+j, MK)
        a(f"v_mul_f32 v24, v24, v{8+2*j}"); a(f"v_mul_f32 v25, v25, v{9+2*j}")
        rnd2(a, 24, 25, 26, MK)
        a(f"v_add_f32 v24, v24, v{16+2*j}"); a(f"v_add_f32 v25, v25, v{17+2*j}")
        a(f"v_cvt_pk_bf16_f32 v{4+j}, v24, v25")
    a("buffer_store_dwordx4 v[4:7], v1, s[12:15], s19 offen")
    a.label("KB_END", flush=False)
    a("s_endpgm")
    return dict(name="kb_kernel", asm=a, grid=NR+NM, block=512, lds=49152, vgprs=80)
```

```python
import sys
from common import *
from ka import gen_ka
from kb import gen_kb
from k2 import gen_k2
from k35 import gen_k35
from k4 import gen_k4
def main(out):
    ks = [gen_ka(), gen_kb(), gen_k2(), gen_k35(3), gen_k4(), gen_k35(5)]
    for k in ks: print(k['name'], k['asm'].nins, k['asm'].stats)
    txt = build_file(ks)
    open(out, 'w').write(txt); print(len(txt), "bytes")
    return ks
if __name__ == '__main__':
    ks = main(sys.argv[1] if len(sys.argv) > 1 else 'adaLN_cond__sliding_block_cached__dense_activation_squared_relu__prompt.s')
    log = ks[2]['asm'].k2log
    print("forced:", [(m, f) for m, f, n in log if f])
```

```python
import re, os
STAMPS = os.environ.get('STAMPS') == '1'
REG = re.compile(r'^(-|\|)?(v|s|a)(\d+|\[(\d+):(\d+)\])\|?$')
def regs(tok):
    tok = tok.strip()
    t = tok.replace('neg(', '').replace('abs(', '').replace(')', '') if '(' in tok else tok
    t = t.lstrip('-').strip('|')
    if t in ('vcc',): return [('s', 'vcc')]
    if t in ('exec',): return [('s', 'exec')]
    if t == 'm0': return [('s', 'm0')]
    if t == 'scc': return []
    m = re.match(r'^(v|s|a)(\d+)$', t)
    if m: return [(m.group(1), int(m.group(2)))]
    m = re.match(r'^(v|s|a)\[(\d+):(\d+)\]$', t)
    if m: return [(m.group(1), i) for i in range(int(m.group(2)), int(m.group(3)) + 1)]
    return []
TRANS = ('v_exp_f32', 'v_log_f32', 'v_rcp_f32', 'v_rsq_f32', 'v_sqrt_f32', 'v_sin_f32', 'v_cos_f32', 'v_rcp_iflag_f32')
def vr(a, n=1): return f"v{a}" if n == 1 else f"v[{a}:{a+n-1}]"
def sr(a, n=1): return f"s{a}" if n == 1 else f"s[{a}:{a+n-1}]"

class Ins:
    __slots__ = ('text', 'mn', 'w', 'r', 'kind', 'passes', 'A', 'B', 'C', 'D', 'pos', 'dpp', 'wide')

class Asm:
    def __init__(self):
        self.lines = []; self.pos = 0; self.hist = []
        self.vm_n = 0; self.lg_n = 0
        self.vm_done = 0; self.lg_done = 0
        self.pend = {}
        self.tok = {}
        self.smem_out = False
        self.nins = 0; self.stats = {}
    def raw(self, text): self.lines.append(text)
    def comment(self, t): self.lines.append(f"  ; {t}")
    def label(self, name, flush=True):
        if flush: self.flush()
        self.lines.append(f"{name}:")
    def flush(self):
        if self.vm_done < self.vm_n or self.lg_done < self.lg_n or self.smem_out:
            self.wait(vm=0 if self.vm_done < self.vm_n else None, lg=0 if (self.lg_done < self.lg_n or self.smem_out) else None)
        need = 0
        for h in self.hist:
            d = self.pos - h.pos - 1
            if h.kind == 'mfma': need = max(need, (12 if h.passes == 8 else 8) - d)
            elif h.kind in ('valu', 'store'): need = max(need, 5 - d)
            elif h.kind == 'salu': need = max(need, 1 - d)
        self.nop(need)
        self.hist = []
    def nop(self, n):
        while n > 0:
            k = min(n, 16); self.lines.append(f"  s_nop {k-1}"); self.pos += k; n -= k; self.nins += 1
            self.stats['nop'] = self.stats.get('nop', 0) + k
    def wait(self, vm=None, lg=None):
        parts = []
        if vm is not None:
            vm = min(vm, 63)
            if self.vm_n - vm > self.vm_done: parts.append(f"vmcnt({vm})"); self.vm_done = self.vm_n - vm
        if lg is not None:
            lg = min(lg, 15)
            if self.lg_n - lg > self.lg_done or (lg == 0 and self.smem_out):
                parts.append(f"lgkmcnt({lg})"); self.lg_done = self.lg_n - lg
                if lg == 0: self.smem_out = False
        if parts:
            self.lines.append("  s_waitcnt " + " ".join(parts)); self.pos += 1; self.nins += 1
            self.stats['wait'] = self.stats.get('wait', 0) + 1
            for k in [k for k, (t, s) in self.pend.items() if (t == 'vm' and s < self.vm_done) or (t == 'lg' and s < self.lg_done) or (t == 'sm' and not self.smem_out)]:
                del self.pend[k]
    def wait_tok(self, *toks):
        s = max(self.tok[t] for t in toks)
        self.wait(vm=self.vm_n - s - 1)
    def parse(self, text):
        t = text.split(';')[0].strip()
        mn, _, rest = t.partition(' ')
        ops = [o.strip() for o in re.split(r',(?![^\[]*\])', rest)] if rest.strip() else []
        mods = ''
        if ops:
            last = ops[-1].split(None, 1)
            ops[-1] = last[0] if last else ''
            mods = last[1] if len(last) > 1 else ''
        I = Ins(); I.text = text; I.mn = mn; I.w = []; I.r = []; I.passes = 0; I.dpp = ('row_' in mods or 'quad_perm' in mods or 'wave_' in mods or '_dpp' in mn); I.wide = False
        R = lambda i: regs(ops[i]) if i < len(ops) else []
        allr = lambda s: [x for o in ops[s:] for x in regs(o)]
        if mn.startswith('v_mfma'):
            I.kind = 'mfma'; I.passes = 8 if '32x32' in mn else 4
            I.D, I.A, I.B, I.C = R(0), R(1), R(2), R(3); I.w = I.D; I.r = I.A + I.B + I.C
        elif mn.startswith('v_'):
            I.kind = 'valu'
            if mn.startswith('v_cmpx'): I.w = [('s', 'exec')]; I.r = allr(0)
            elif mn.startswith('v_cmp'): I.w = R(0); I.r = allr(1)
            elif mn.startswith('v_permlane') and 'swap' in mn: I.w = R(0) + R(1); I.r = R(0) + R(1)
            elif mn.startswith('v_swap'): I.w = R(0) + R(1); I.r = R(0) + R(1)
            elif '_co_' in mn: I.w = R(0) + R(1); I.r = allr(2)
            elif mn.startswith(('v_fmac', 'v_mac', 'v_dot2c', 'v_writelane', 'v_pk_fmac')): I.w = R(0); I.r = allr(0)
            elif mn.startswith('v_cndmask') and len(ops) == 3: I.w = R(0); I.r = allr(1) + [('s', 'vcc')]
            else: I.w = R(0); I.r = allr(1)
            if I.dpp and 'bound_ctrl' not in mods: I.r = I.r + R(0)
        elif mn.startswith('ds_'):
            if mn.startswith(('ds_read', 'ds_bpermute', 'ds_permute', 'ds_swizzle')) or '_rtn' in mn: I.kind = 'dsr'; I.w = R(0); I.r = allr(1)
            else: I.kind = 'dsw'; I.r = allr(0)
        elif mn.startswith(('buffer_load', 'global_load')):
            if ' lds' in (' ' + mods) or 'load_lds' in mn: I.kind = 'dma'; I.r = allr(0) + [('s', 'm0')]
            else: I.kind = 'vload'; I.w = R(0); I.r = allr(1)
        elif mn.startswith(('buffer_store', 'global_store')):
            I.kind = 'store'; I.r = allr(0); I.wide = mn.endswith(('x3', 'x4'))
        elif mn.startswith(('buffer_atomic', 'global_atomic')):
            if 'sc0' in mods: I.kind = 'vload'; I.w = R(0); I.r = allr(0)
            else: I.kind = 'store'; I.r = allr(0)
        elif mn.startswith(('buffer_inv', 'buffer_wbl2')): I.kind = 'store'
        elif mn.startswith(('s_load', 's_memtime', 's_memrealtime', 's_buffer_load')): I.kind = 'smem'; I.w = R(0); I.r = allr(1)
        elif mn.startswith(('s_cmp', 's_cbranch', 's_branch', 's_barrier', 's_endpgm', 's_setprio', 's_sleep', 's_bitcmp', 's_sethalt')):
            I.kind = 'salu'; I.r = allr(0)
        elif mn.startswith('s_'):
            I.kind = 'salu'; I.w = R(0); I.r = allr(1)
            if 'saveexec' in mn: I.w = I.w + [('s', 'exec')]
        else: raise ValueError("unknown instr " + text)
        return I
    def _waits(self, I):
        W = set(I.w); Rd = set(I.r)
        vm = lg = None
        for x in W | Rd:
            p = self.pend.get(x)
            if p:
                if p[0] == 'vm': n = self.vm_n - p[1] - 1; vm = n if vm is None else min(vm, n)
                elif p[0] == 'lg':
                    n = 0 if self.smem_out else self.lg_n - p[1] - 1
                    lg = n if lg is None else min(lg, n)
                else: lg = 0
        return vm, lg
    def _need(self, I):
        W = set(I.w); Rd = set(I.r)
        need = 0
        isv = I.kind == 'valu'; ismem = I.kind in ('dsr', 'dsw', 'dma', 'vload', 'store')
        isvmem = I.kind in ('dma', 'vload', 'store')
        for h in self.hist:
            d = self.pos - h.pos - 1
            req = 0
            hw = set(h.w)
            if h.kind == 'mfma':
                big, ovl, war = (12, 10, 7) if h.passes == 8 else (8, 6, 3)
                if I.kind == 'mfma':
                    if hw & (set(I.A) | set(I.B)): req = max(req, big)
                    if hw & set(I.C) and not (I.C == h.D and I.passes == h.passes): req = max(req, ovl)
                    if hw & set(I.D) and not (I.C == h.D and I.D == h.D): req = max(req, ovl)
                elif isv or ismem:
                    if hw & (W | Rd): req = max(req, big)
                    if isv and set(h.C) & W: req = max(req, war)
                    if I.kind in ('dsr', 'vload') and set(h.C) & W: req = max(req, war)
            elif h.kind == 'valu':
                vw = {x for x in hw if x[0] != 's'}; sw = {x for x in hw if x[0] == 's'}
                isdot = h.mn.startswith('v_dot')
                if I.kind == 'mfma':
                    if vw & Rd: req = max(req, 3 if isdot else 2)
                    if ('s', 'exec') in sw: req = max(req, 4)
                if isv:
                    if isdot and (vw & (W | Rd)):
                        ops_c_only = (I.mn == h.mn) and not (vw & set(self._dot_ab(I)))
                        if not ops_c_only: req = max(req, 3)
                    if h.mn.startswith(TRANS) and not I.mn.startswith(TRANS) and (vw & Rd): req = max(req, 1)
                    if I.mn.startswith(('v_readlane', 'v_readfirstlane')) and (vw & Rd): req = max(req, 1)
                    if I.mn.startswith('v_permlane') and (vw & Rd): req = max(req, 2)
                    if I.dpp and (vw & Rd): req = max(req, 2)
                    if sw & Rd: req = max(req, 4 if I.mn.startswith(('v_readlane', 'v_writelane', 'v_div_fmas')) else 2)
                    if ('s', 'exec') in sw: req = max(req, 5 if I.dpp else 4)
                if isvmem and (sw & Rd): req = max(req, 5)
                if ismem and isdot and (vw & Rd): req = max(req, 3)
                if ismem and h.mn.startswith(TRANS) and (vw & Rd): req = max(req, 1)
                if I.kind == 'salu' and (sw & Rd): req = max(req, 1)
            elif h.kind == 'salu':
                if ('s', 'm0') in hw and I.kind == 'dma': req = max(req, 1)
                if ('s', 'exec') in hw and I.dpp: req = max(req, 5)
            elif h.kind == 'store':
                if h.wide and (set(h.r) & W): req = max(req, 2 if isv else 1)
            need = max(need, req - d)
        return need
    def probe(self, text):
        I = self.parse(text)
        vm, lg = self._waits(I)
        w = (vm is not None and self.vm_n - min(vm, 63) > self.vm_done) or (lg is not None and (self.lg_n - min(lg, 15) > self.lg_done or self.smem_out))
        return max(0, self._need(I) - (1 if w else 0)), w
    def __call__(self, text, tok=None):
        I = self.parse(text)
        isvmem = I.kind in ('dma', 'vload', 'store')
        vm, lg = self._waits(I)
        if vm is not None or lg is not None: self.wait(vm, lg)
        self.nop(self._need(I))
        I.pos = self.pos
        self.lines.append("  " + text); self.pos += 1; self.nins += 1
        self.stats[I.kind] = self.stats.get(I.kind, 0) + 1
        self.hist.append(I); self.hist = [h for h in self.hist if self.pos - h.pos <= 21]
        if isvmem:
            for x in I.w: self.pend[x] = ('vm', self.vm_n)
            if tok is not None: self.tok[tok] = self.vm_n
            self.vm_n += 1
        elif I.kind in ('dsr', 'dsw'):
            for x in I.w: self.pend[x] = ('lg', self.lg_n)
            self.lg_n += 1
        elif I.kind == 'smem':
            for x in I.w: self.pend[x] = ('sm', 0)
            self.smem_out = True
        return I
    def barrier(self, vm=None, lg=0):
        if lg is not None and self.smem_out: lg = 0
        self.wait(vm=vm, lg=lg)
        self("s_barrier")
    def _dot_ab(self, I):
        t = I.text.split(';')[0].strip(); rest = t.partition(' ')[2]
        ops = [o.strip().split()[0] for o in re.split(r',(?![^\[]*\])', rest)]
        return regs(ops[1]) + regs(ops[2])
    def srd(self, s, lo, hi, nbytes):
        self(f"s_mov_b32 s{s}, s{lo}"); self(f"s_mov_b32 s{s+1}, s{hi}")
        self(f"s_mov_b32 s{s+2}, {nbytes}"); self(f"s_mov_b32 s{s+3}, 0x00020000")
    def text(self): return "\n".join(self.lines)
    def stamp(self, k, real=False):
        if not STAMPS: return
        self(f"{'s_memrealtime' if real else 's_memtime'} s[{64+2*k}:{65+2*k}]")
        self.nst = max(getattr(self, 'nst', 0), k + 1)
    def dump(self, srd, kidx, n, vt=1, waves=8, drain=True):
        if not STAMPS: return
        if drain: self.raw("  s_waitcnt vmcnt(0)")
        self.stamp(n); self.stamp(n + 1, True)
        self.raw("  s_waitcnt lgkmcnt(0)"); self.smem_out = False
        self.raw("  s_mov_b64 exec, -1")
        self.raw(f"  v_readfirstlane_b32 s62, v0"); self.raw("  s_nop 4"); self.raw("  s_lshr_b32 s62, s62, 6"); self.raw("  s_lshl_b32 s63, s2, 3"); self.raw("  s_add_u32 s62, s62, s63")
        self.raw("  s_lshl_b32 s62, s62, 7"); self.raw(f"  s_add_u32 s62, s62, {0x4000000 + kidx * 0x100000}")
        self.raw("  s_nop 8")
        self.raw(f"  v_mov_b32 v{vt}, 0")
        for i in range(2 * (n + 2)): self.raw(f"  v_writelane_b32 v{vt}, s{64+i}, {i}")
        self.raw(f"  v_mbcnt_lo_u32_b32 v{vt+1}, -1, 0"); self.raw(f"  v_mbcnt_hi_u32_b32 v{vt+1}, -1, v{vt+1}"); self.raw(f"  v_lshlrev_b32 v{vt+1}, 2, v{vt+1}")
        self.raw(f"  s_mov_b64 exec, 0xffffffff"); self.raw("  s_nop 4")
        self.raw(f"  buffer_store_dword v{vt}, v{vt+1}, s[{srd}:{srd+3}], s62 offen")

def kdesc(name, vgprs, accum=None, sgprs=102):
    accum = accum or min(256, (vgprs + 3) // 4 * 4)
    return f""".p2align 6
.amdhsa_kernel {name}
  .amdhsa_next_free_vgpr {vgprs}
  .amdhsa_next_free_sgpr {sgprs}
  .amdhsa_accum_offset {accum}
  .amdhsa_group_segment_fixed_size 0
  .amdhsa_kernarg_size 120
  .amdhsa_user_sgpr_count 2
  .amdhsa_user_sgpr_kernarg_segment_ptr 1
  .amdhsa_system_sgpr_workgroup_id_x 1
.end_amdhsa_kernel"""

def build_file(kernels):
    hdr = "".join(f"; @launch kernel={k['name']} grid=({k['grid']},1,1) block=({k['block']},1,1) lds={k['lds']}\n" for k in kernels)
    seen = []; body = ""; kds = ""
    for k in kernels:
        if k['name'] in seen: continue
        seen.append(k['name'])
        body += f".globl {k['name']}\n.p2align 8\n.type {k['name']},@function\n{k['name']}:\n{k['asm'].text()}\n"
        kds += kdesc(k['name'], k['vgprs'], k.get('accum')) + "\n"
    return hdr + '.amdgcn_target "amdgcn-amd-amdhsa--gfx950"\n.text\n' + body + '.section .rodata,"a"\n' + kds
```

```python
from common import *
import math
def gen_k1(PF=6, CAP=20, HW=16, PSL=2, NSL=64, H0=4, MSL=30, MSL0=20, NW0=4, KIS=1, XP=0, M1D=0, PAIR=1, OSC='sc1', RSC='sc1', WT=1, STMS=(40, 80, 160, 288)):
    a = Asm()
    STM = dict(zip(STMS, (5, 6, 7, 8, 12, 13)))
    NWG = 256
    TRL, TRH, KR = 1, 5, 9
    DWQ0, DWQ1, DV, DK0, DK1, L16 = 17, 18, 19, 20, 21, 22
    L0, L1, MFLOOR, VMAX, T0, T1, T2, T3 = 23, 24, 25, 26, 27, 28, 29, 30
    NM, SB, PB, HB, ACC, QF, AB = 32, 48, 96, 32, 128, 192, 224
    NB = 8
    sW, sHD, sRB, sM0, sH, sKV, sO, sMODE, sD, sHC, sSC, sO2 = 20, 21, 22, 23, 24, 25, 26, 27, 28, 29, 30, 31
    FLAG = 131072 + 16384
    SCR = FLAG + 256
    MK = 30
    NUNIT = 242
    slots = [('W', i) for i in range(10)] + [('K', 0)]
    for j in range(1, 8): slots += [('K', j), ('V', j-1)]
    slots += [('V', 7)]
    def bufof(x):
        kind, j = slots[x]
        return 1 + j % 3 if kind == 'W' else (4 + j % 4 if kind == 'K' else j % 4)
    def dma(x, w0=None):
        kind, j = slots[x]; buf = bufof(x)
        if kind == 'W':
            a(f"s_mov_b32 s{sD}, {j*524288}")
            v0_, v1_ = (w0, w0 + 1) if w0 else (DWQ0, DWQ1); r = QF + 8 * (j % 4)
            return [f"buffer_load_dwordx4 v[{r}:{r+3}], v{v0_}, s[4:7], s{sD} offen", f"buffer_load_dwordx4 v[{r+4}:{r+7}], v{v1_}, s[4:7], s{sD} offen"]
        a(f"s_add_u32 s{sD}, s{sKV}, {j*16384}")
        a(f"s_add_u32 m0, s{sM0}, {buf*16384}")
        v0_, v1_, srd = {'K': (DK0, DK1, 8), 'V': (DV, DV, 12)}[kind]
        return [f"buffer_load_dwordx4 v{v0_}, s[{srd}:{srd+3}], s{sD} offen lds", f"buffer_load_dwordx4 v{v1_}, s[{srd}:{srd+3}], s{sD} offen offset:1024 lds"]
    def reset():
        a.hist = []; a.pend = {}; a.vm_done = a.vm_n; a.lg_done = a.lg_n; a.smem_out = False
    def dwq(d0, d1, t):
        a(f"v_bfe_u32 v{t}, v0, 4, 2"); a(f"v_and_b32 v{t+1}, 15, v0"); a(f"v_lshlrev_b32 v{t+1}, 4, v{t+1}")
        a(f"v_lshl_add_u32 v{d0}, v{t}, 13, v{t+1}")
        a(f"s_lshl_b32 s32, s{sW}, 16"); a(f"s_lshl_b32 s33, s{sHD}, 8"); a("s_add_u32 s32, s32, s33")
        a(f"v_add_u32 v{d0}, s32, v{d0}"); a(f"v_add_u32 v{d1}, {4*8192}, v{d0}")
    def tagreq():
        a("s_memrealtime s[98:99]")
        a(f"s_cmp_eq_u32 s{sW}, 0"); a("s_cselect_b32 s96, 0, 0x1000")
        a("v_mov_b32 v249, s96"); a("v_mov_b32 v254, 0"); a("v_mov_b32 v255, 0")
        a("v_mov_b32 v252, s98"); a("v_mov_b32 v253, s99")
        a("s_mov_b64 exec, 1")
        a("buffer_atomic_cmpswap_x2 v[252:255], v249, s[52:55], 0 offen sc0 sc1")
        a("s_mov_b64 exec, -1")
    def gettag():
        a("v_readfirstlane_b32 s96, v252"); a("v_readfirstlane_b32 s97, v253")
        a("s_cmp_eq_u64 s[96:97], 0"); a("s_cselect_b64 s[96:97], s[98:99], s[96:97]")
    def poll(name, loads, chk):
        a("s_mov_b32 s60, 200000")
        a.label(f"{name}_L", flush=True)
        for t in loads: a(t)
        for i, r in enumerate(chk):
            a(f"v_cmp_ne_u64 vcc, s[96:97], v[{r}:{r+1}]")
        a("s_cmp_eq_u64 vcc, 0"); a(f"s_cbranch_scc1 {name}_A")
        a("s_sub_u32 s60, s60, 1"); a(f"s_cbranch_scc1 {name}_A")
        a(f"s_sleep {PSL}"); a(f"s_branch {name}_L")
        a.label(f"{name}_A", flush=False)
    EW = 250
    RD, TM, T2A, GS, RA, RA2, GA, TX = 96, 104, 112, 120, 124, 125, 126, 31
    RP5, RP6, RP4, RP7, RP7B = 124, 125, 127, 27, 28
    TAGL = FLAG + 64
    T2P = SCR + 5120; T2T = T2P + 4096
    a(f"s_cmp_ge_u32 s2, {NWG}"); a("s_cbranch_scc1 K2_END")
    a.stamp(0, True); a.stamp(1); a.stamp(4); a.stamp(5); a.stamp(6); a.stamp(7); a.stamp(13, True)
    load_srds(a, [(40, KA_C), (44, KA_WMOD), (48, KA_X), (16, KA_WS), (4, KA_WQ), (52, KA_DBG), (8, KA_K), (12, KA_V)])
    a(f"v_readfirstlane_b32 s{sW}, v0"); a(f"s_lshr_b32 s{sW}, s{sW}, 6")
    a(f"s_and_b32 s{sHD}, s2, 7"); a(f"s_lshl_b32 s{sHD}, s{sHD}, 2"); a("s_bfe_u32 s32, s2, 0x20003"); a(f"s_add_u32 s{sHD}, s{sHD}, s32")
    a(f"s_lshr_b32 s{sRB}, s2, 5")
    a(f"s_lshl_b32 s{sM0}, s{sW}, 11")
    a(f"s_mov_b32 s{MK}, 0xffff0000")
    a("s_cmp_ge_u32 s2, 184"); a("s_cbranch_scc1 K1_NONE")
    a("s_sub_u32 s24, s2, 40"); a("s_cmp_lt_u32 s24, 64"); a("s_cbranch_scc1 K1_LN")
    st0 = (a.hist[:], dict(a.pend), a.vm_n, a.vm_done, a.lg_n, a.lg_done)
    a("s_cmp_lt_u32 s2, 40"); a("s_cselect_b32 s24, 0, 64"); a("s_sub_u32 s24, s2, s24")
    if PAIR:
        a("s_and_b32 s25, s24, 7"); a("s_lshl_b32 s25, s25, 1"); a("s_bfe_u32 s26, s24, 0x10003"); a("s_or_b32 s25, s25, s26"); a("s_andn2_b32 s26, s24, 15"); a("s_or_b32 s25, s25, s26")
        a("s_sub_u32 s26, s24, 32"); a("s_cmp_lt_u32 s26, 16"); a("s_cselect_b32 s25, s24, s25"); a("s_cmp_ge_u32 s24, 112"); a("s_cselect_b32 s24, s24, s25")
    dwq(EW, EW+1, 60)
    a("s_cmp_lt_u32 s2, 40"); a("s_cbranch_scc1 K1_MGO")
    stm = (dict(a.pend), a.vm_n, a.vm_done)
    if MSL0 and M1D: a(f"s_sleep {MSL0}")
    for x in range(NW0 if M1D else 0):
        d = dma(x, EW); a(d[0]); a(d[1])
    if MSL: a(f"s_sleep {MSL}")
    a.label("K1_MGO", flush=False); a.pend, a.vm_n, a.vm_done = stm; a.smem_out = True
    a("v_lshrrev_b32 v1, 2, v0"); a("v_and_b32 v2, 3, v0")
    a("v_mul_u32_u24 v3, 10, v1"); a("v_mul_u32_u24 v4, 38400, v1"); a("v_lshl_add_u32 v4, v2, 4, v4")
    a("s_lshl_b32 s25, s24, 6")
    for i in range(1, 5): a(f"s_add_u32 s{25+i}, s25, {7680*i}")
    for i in range(5): a(f"buffer_load_dwordx4 v[{16+4*i}:{19+4*i}], v4, s[44:47], s{25+i} offen")
    for i in range(5): a(f"buffer_load_ushort v{10+i}, v3, s[40:43], 0 offen offset:{2*i}")
    tagreq()
    for i in range(5):
        x, e = 10+i, 40+i
        a(f"v_lshlrev_b32 v{x}, 16, v{x}")
        a(f"v_mul_f32 v{e}, {f32(-LOG2E)}, v{x}")
        a(f"v_exp_f32 v{e}, v{e}")
        a(f"v_add_f32 v{e}, 1.0, v{e}")
        a(f"v_rcp_f32 v{e}, v{e}")
        a(f"v_mul_f32 v{x}, v{x}, v{e}")
        rnd1(a, x)
    a.stamp(6)
    AC = 48
    for i in range(5):
        for j in range(4):
            unpack2(a, 56, 57, 16+4*i+j, MK)
            if i == 0:
                a(f"v_mul_f32 v{AC+2*j}, v56, v10"); a(f"v_mul_f32 v{AC+2*j+1}, v57, v10")
            else:
                a(f"v_fmac_f32 v{AC+2*j}, v56, v{10+i}"); a(f"v_fmac_f32 v{AC+2*j+1}, v57, v{10+i}")
    for sh in (8, 4):
        for j in range(8): a(f"v_add_f32_dpp v{AC+j}, v{AC+j}, v{AC+j} row_ror:{sh} row_mask:0xf bank_mask:0xf")
    a("v_lshrrev_b32 v5, 4, v0"); a("v_lshlrev_b32 v5, 7, v5"); a("v_lshl_add_u32 v5, v2, 5, v5"); a(f"v_add_u32 v5, {SCR}, v5")
    a(f"ds_write_b128 v5, v[{AC}:{AC+3}]"); a(f"ds_write_b128 v5, v[{AC+4}:{AC+7}] offset:16")
    a.barrier()
    a.stamp(4)
    a(f"s_cmp_lg_u32 s{sW}, 0"); a("s_cbranch_scc1 K1_MEND")
    a("v_and_b32 v6, 31, v0"); a("v_lshrrev_b32 v7, 5, v0"); a("v_lshlrev_b32 v7, 11, v7"); a("v_lshl_add_u32 v7, v6, 2, v7"); a(f"v_add_u32 v7, {SCR}, v7")
    for j in range(16): a(f"ds_read_b32 v{16+j}, v7 offset:{128*j}")
    for j in (8, 4, 2, 1):
        for i in range(j): a(f"v_add_f32 v{16+i}, v{16+i}, v{16+i+j}")
    xsum_swap(a, 16, 17, 32)
    rnd1(a, 16)
    a("s_mov_b32 s31, 0")
    a("s_sub_u32 s26, s24, 20"); a("s_cmp_lt_u32 s26, 20"); a("s_cselect_b32 s31, 1.0, s31")
    a("s_sub_u32 s26, s24, 80"); a("s_cmp_lt_u32 s26, 20"); a("s_cselect_b32 s31, 1.0, s31")
    a("v_add_f32 v16, s31, v16")
    a("v_cvt_pk_bf16_f32 v17, v16, v16"); a("v_lshlrev_b32 v16, 16, v17")
    a("v_lshlrev_b32 v8, 2, v6"); a("v_lshlrev_b32 v9, 1, v6")
    a("s_lshl_b32 s26, s24, 7"); a(f"s_add_u32 s27, s25, {MODB}")
    gettag()
    a("s_cmp_ge_u32 s24, 40"); a("s_cbranch_scc1 K1_MODB")
    a(f"v_add_u32 v20, {SCR+4096}, v9"); a("ds_write_b16 v20, v17")
    a("v_and_b32 v21, 7, v0"); a(f"v_lshlrev_b32 v22, 3, v21"); a(f"v_add_u32 v22, {SCR+4096}, v22")
    a("ds_read_b64 v[24:25], v22")
    a("v_lshrrev_b32 v23, 3, v0"); a("v_lshlrev_b32 v23, 13, v23"); a("v_lshl_add_u32 v23, v21, 4, v23")
    a("v_mov_b32 v26, s96"); a("v_mov_b32 v27, s97")
    a.stamp(5)
    a(f"s_add_u32 s28, s26, {MPAY}")
    for i in range(4):
        a("buffer_store_dwordx4 v[24:27], v23, s[16:19], s28 offen sc1")
        if i < 3: a("s_add_u32 s28, s28, 65536")
    a.label("K1_MODB", flush=False)
    a("buffer_store_dword v16, v8, s[16:19], s26 offen")
    a("buffer_store_short v17, v9, s[16:19], s27 offen")
    a.stamp(7); a.stamp(13, True)
    a.label("K1_MEND", flush=False)
    a("s_cmp_lt_u32 s2, 40"); a("s_cbranch_scc1 K1_BULK")
    a("s_branch K1_BULK2" if M1D else "s_branch K1_BULK")
    a.label("K1_LN", flush=False)
    a.hist, a.pend, a.vm_n, a.vm_done, a.lg_n, a.lg_done = st0; a.smem_out = True
    a("v_and_b32 v1, 3, v0"); a("v_lshrrev_b32 v2, 6, v0"); a("v_lshl_add_u32 v1, v2, 2, v1")
    a("v_bfe_u32 v2, v0, 2, 4")
    a("v_mul_u32_u24 v3, 1280, v1"); a("v_lshl_add_u32 v3, v2, 4, v3")
    a("s_mul_i32 s26, s24, 40960")
    for i in range(5): a(f"buffer_load_dwordx4 v[{8+4*i}:{11+4*i}], v3, s[48:51], s26 offen offset:{256*i}")
    tagreq()
    dwq(EW, EW+1, 60)
    a("v_lshlrev_b32 v4, 9, v2"); a("v_lshl_add_u32 v4, v1, 4, v4")
    a(f"s_add_u32 s34, s26, {HBUF}")
    for i in range(1, 5): a(f"s_add_u32 s{34+i}, s34, {8192*i}")
    a("s_lshr_b32 s39, s24, 3"); a("s_lshl_b32 s39, s39, 13"); a("s_and_b32 s29, s24, 7"); a("s_lshl_b32 s29, s29, 3"); a("s_add_u32 s39, s39, s29"); a(f"s_add_u32 s39, s39, {HFL}")
    X = 32
    for i in range(20): unpack2(a, X+2*i, X+2*i+1, 8+i, MK)
    a.stamp(6)
    a(f"v_add_f32 v5, v{X}, v{X+1}"); a(f"v_add_f32 v6, v{X+2}, v{X+3}")
    for i in range(4, 40, 2): a(f"v_add_f32 v5, v5, v{X+i}"); a(f"v_add_f32 v6, v6, v{X+i+1}")
    a("v_add_f32 v5, v5, v6")
    def allred(r):
        for sh in (8, 4): a(f"v_add_f32_dpp v{r}, v{r}, v{r} row_ror:{sh} row_mask:0xf bank_mask:0xf")
        xsum_swap(a, r, 7, 16); xsum_swap(a, r, 7, 32)
    allred(5)
    a(f"v_mul_f32 v5, {f32(1/640)}, v5")
    a("v_mov_b32 v6, 0"); a("v_mov_b32 v30, 0")
    for i in range(0, 40, 2):
        a(f"v_sub_f32 v28, v{X+i}, v5"); a(f"v_sub_f32 v29, v{X+i+1}, v5")
        a("v_fmac_f32 v6, v28, v28"); a("v_fmac_f32 v30, v29, v29")
    a("v_add_f32 v6, v6, v30")
    allred(6)
    a(f"v_mul_f32 v6, {f32(1/640)}, v6")
    rnd2(a, 5, 6, 7, MK)
    a(f"v_add_f32 v6, {f32(1e-5)}, v6"); rnd1(a, 6)
    a("v_sqrt_f32 v6, v6"); rnd1(a, 6)
    a("v_rcp_f32 v6, v6")
    for i in range(20):
        x, y = X+2*i, X+2*i+1
        a(f"v_sub_f32 v{x}, v{x}, v5"); a(f"v_sub_f32 v{y}, v{y}, v5")
        rnd2(a, x, y, 28, MK)
        a(f"v_mul_f32 v{x}, v{x}, v6"); a(f"v_mul_f32 v{y}, v{y}, v6")
        a(f"v_cvt_pk_bf16_f32 v{8+i}, v{x}, v{y}")
        if i % 4 == 3: a(f"buffer_store_dwordx4 v[{8+i-3}:{8+i}], v4, s[16:19], s{34+i//4} offen sc1")
    a.stamp(5)
    a.barrier(vm=0)
    a(f"s_cmp_lg_u32 s{sW}, 0"); a("s_cbranch_scc1 K1_BULK")
    gettag()
    a("v_lshlrev_b32 v1, 8, v0"); a("v_mov_b32 v2, s96"); a("v_mov_b32 v3, s97"); a("s_mov_b64 exec, 0xffffffff")
    a("buffer_store_dwordx2 v[2:3], v1, s[16:19], s39 offen sc1")
    a("s_mov_b64 exec, -1")
    a.stamp(7); a.stamp(13, True)
    a("s_branch K1_BULK")
    a.label("K1_NONE", flush=False)
    a.hist, a.pend, a.vm_n, a.vm_done, a.lg_n, a.lg_done = st0; a.smem_out = True
    tagreq()
    dwq(EW, EW+1, 60)
    if NSL: a(f"s_sleep {NSL}")
    a.wait(lg=0)
    a.stamp(6); a.stamp(7); a.stamp(13, True)
    for x in range(NW0):
        d = dma(x, EW); a(d[0]); a(d[1])
    gettag()
    a("s_branch K1_BULK2")
    a.label("K1_BULK", flush=False); reset()
    for x in range(NW0):
        d = dma(x, EW); a(d[0]); a(d[1])
    a.label("K1_BULK2", flush=False); a.hist = []
    RB0 = 6 * 16384

    a("s_cmp_ge_u32 s2, 182"); a("s_cbranch_scc1 K1_W1")
    a("s_cmp_ge_u32 s2, 128"); a("s_cbranch_scc1 K1_W2")
    load_srds(a, [(56, KA_WO)])
    a("s_mul_i32 s40, s2, 40960"); a("s_mul_i32 s42, s2, 5120"); a(f"s_mul_i32 s46, s{sW}, {128*5120}")
    a(f"s_add_u32 s42, s42, {WOP}")
    a("s_branch K1_P5")
    a.label("K1_W2", flush=False)
    load_srds(a, [(56, KA_W2)])
    a("s_sub_u32 s47, s2, 128")
    a("s_mul_i32 s40, s47, 40960"); a("s_mul_i32 s42, s47, 5120"); a(f"s_mul_i32 s46, s{sW}, {54*5120}")
    a(f"s_add_u32 s42, s42, {W2P}")
    a.label("K1_P5", flush=False)
    a("s_add_u32 s42, s42, s46"); a("s_mov_b32 s41, -64"); a(f"s_mul_i32 s43, s{sW}, 160"); a("s_mov_b32 s44, 0"); a("s_mov_b32 s45, 8")
    a("s_branch K1_DMA")
    a.label("K1_W1", flush=False)
    load_srds(a, [(56, KA_W1)])
    a("s_sub_u32 s47, s2, 182")
    a("s_mov_b32 s24, 0"); a("s_mov_b32 s45, 6")
    a("s_cmp_ge_u32 s47, 20"); a("s_cselect_b32 s24, 6, s24"); a("s_cselect_b32 s45, 5, s45"); a("s_cselect_b32 s25, 20, 0")
    a("s_cmp_ge_u32 s47, 40"); a("s_cselect_b32 s24, 11, s24"); a("s_cselect_b32 s25, 40, s25")
    a("s_sub_u32 s47, s47, s25")
    a(f"s_mul_i32 s40, s47, {32*3456}"); a("s_mul_i32 s25, s24, 224"); a("s_add_u32 s40, s40, s25")
    a(f"s_add_u32 s24, s24, s{sW}")
    a("s_mul_i32 s42, s24, 20"); a("s_add_u32 s42, s42, s47"); a("s_mul_i32 s42, s42, 7168"); a(f"s_add_u32 s42, s42, {W1P}")
    a(f"s_mov_b32 s41, {3456-1344}"); a(f"s_mul_i32 s43, s{sW}, 224"); a("s_mov_b32 s44, 1")
    a.label("K1_DMA", flush=False)
    a.smem_out = True
    a("s_add_u32 s47, s42, 4096"); a(f"s_add_u32 s43, s43, {RB0}")
    a(f"s_lshl_b32 s46, s{sW}, 10"); a(f"s_add_u32 s46, s46, {RB0}")
    a.hist = []
    a.stamp(8)
    a(f"s_lshl_b32 s32, s{sRB}, 3"); a(f"s_add_u32 s32, s32, s{sW}")
    a(f"s_mul_i32 s{sH}, s32, 40960"); a(f"s_add_u32 s{sH}, s{sH}, {HBUF}")
    a(f"s_lshl_b32 s{sKV}, s{sHD}, 19"); a(f"s_add_u32 s{sKV}, s{sKV}, {1536*256}")
    a(f"s_lshl_b32 s{sO}, s32, 18"); a(f"s_lshl_b32 s33, s{sHD}, 13"); a(f"s_add_u32 s{sO}, s{sO}, s33"); a(f"s_add_u32 s{sO}, s{sO}, {OBUF}")
    a(f"s_add_u32 s{sO2}, s{sO}, 4096")
    a(f"s_mov_b32 s{sMODE}, 0"); a(f"s_mov_b32 s{sSC}, {f32(LOG2E / math.sqrt(128.0))}")
    a("s_mov_b64 s[34:35], 0")
    a.nop(2)
    a(f"v_mov_b32 v{DWQ0}, v{EW}"); a(f"v_mov_b32 v{DWQ1}, v{EW+1}")
    la, g, q2, c4, t5, t6 = AB, AB+1, AB+2, AB+3, AB+4, AB+5
    a(f"v_and_b32 v{la}, 63, v0"); a(f"v_lshrrev_b32 v{g}, 4, v{la}"); a(f"v_bfe_u32 v{q2}, v0, 2, 2"); a(f"v_and_b32 v{c4}, 3, v0")
    a(f"v_lshlrev_b32 v{L16}, 4, v{la}")
    a(f"v_xor_b32 v{t5}, v{q2}, v{g}"); a(f"v_lshlrev_b32 v{t5}, 6, v{t5}"); a(f"v_lshl_add_u32 v{t5}, v{c4}, 4, v{t5}")
    a(f"v_lshl_add_u32 v{DV}, v{g}, 8, v{t5}"); a(f"v_add_u32 v{DV}, s{sM0}, v{DV}")
    a(f"s_and_b32 s32, s{sW}, 1"); a("s_lshl_b32 s32, s32, 3")
    a(f"v_add_u32 v{t5}, s32, v{g}"); a(f"v_and_b32 v{t6}, 15, v0"); a(f"v_xor_b32 v{t5}, v{t5}, v{t6}")
    a(f"v_lshlrev_b32 v{DK0}, 8, v{g}"); a(f"v_add_u32 v{DK0}, s{sM0}, v{DK0}")
    a(f"v_xor_b32 v{t6}, 4, v{t5}")
    a(f"v_lshl_add_u32 v{DK1}, v{t6}, 4, v{DK0}"); a(f"v_lshl_add_u32 v{DK0}, v{t5}, 4, v{DK0}")
    a(f"v_lshrrev_b32 v{t5}, 1, v{g}"); a(f"v_lshl_add_u32 v{t5}, v{t5}, 3, v{q2}"); a(f"v_lshlrev_b32 v{t5}, 8, v{t5}")
    a(f"v_and_b32 v{t6}, 1, v{g}"); a(f"v_lshl_add_u32 v{t5}, v{t6}, 5, v{t5}")
    a(f"v_and_b32 v{t6}, 1, v{c4}"); a(f"v_lshl_add_u32 v{t5}, v{t6}, 4, v{t5}")
    a(f"v_lshrrev_b32 v{t6}, 1, v{c4}"); a(f"v_lshl_add_u32 v{t5}, v{t6}, 3, v{t5}")
    for b in range(4):
        a(f"v_xor_b32 v{t6}, {b}, v{q2}"); a(f"v_lshl_add_u32 v{TRL+b}, v{t6}, 6, v{t5}"); a(f"v_add_u32 v{TRH+b}, 0x10000, v{TRL+b}")
    a(f"v_and_b32 v{t5}, 19, v0"); a(f"v_bfe_u32 v{t6}, v0, 2, 1"); a(f"v_lshl_add_u32 v{t5}, v{t6}, 3, v{t5}")
    a(f"v_bfe_u32 v{t6}, v0, 3, 1"); a(f"v_lshl_add_u32 v{t5}, v{t6}, 2, v{t5}")
    a(f"v_and_b32 v{t6}, 15, v{t5}"); a(f"v_lshrrev_b32 v{g}, 5, v{la}"); a(f"v_xor_b32 v{t6}, v{t6}, v{g}")
    a(f"v_lshlrev_b32 v{t6}, 4, v{t6}"); a(f"v_lshl_add_u32 v{t5}, v{t5}, 8, v{t6}")
    a(f"v_add_u32 v{t5}, 0x10000, v{t5}")
    for t in range(8): a(f"v_xor_b32 v{KR+t}, {32*t}, v{t5}")
    def addr_rmw():
        pass
        a(f"v_bfe_u32 v{g}, v0, 4, 2"); a(f"s_lshl_b32 s32, s{sW}, 5"); a(f"s_add_u32 s32, s32, {SCR}"); a(f"v_lshl_add_u32 v{GA}, v{g}, 2, s32")
    addr_rmw()
    def hload(f):
        if f % 4 == 0 or f == H0: a(f"s_add_u32 s{sHC}, s{sH}, {1024*(f - f % 4) if not (XP == 2 and f >= 16) else 0}")
        r = HB + 4 * (f % HW)
        a(f"buffer_load_dwordx4 v[{r}:{r+3}], v{L16}, s[16:19], s{sHC} offen offset:{1024*(f % 4)}")
    if WT:
        a(f"v_min_u32 v{RD}, 11, v{la}"); a(f"s_mul_i32 s32, s{sW}, 12"); a(f"v_add_u32 v{RD}, s32, v{RD}")
        a(f"v_lshrrev_b32 v{RD+1}, 1, v{RD}"); a(f"v_and_b32 v{RD}, 1, v{RD}"); a(f"v_lshlrev_b32 v{RD+1}, 13, v{RD+1}"); a(f"v_lshl_add_u32 v{RD}, v{RD}, 7, v{RD+1}")
        a(f"s_mul_i32 s32, s{sRB}, {48*8192}"); a(f"s_lshl_b32 s33, s{sHD}, 8"); a("s_add_u32 s32, s32, s33"); a(f"s_add_u32 s32, s32, {256*8192}")
        a(f"buffer_load_dword v{T3}, v{RD}, s[4:7], s32 offen")
    a(f"v_mov_b32 v{t5}, {TAGL}"); a(f"v_mov_b32 v{AB+6}, s96"); a(f"v_mov_b32 v{AB+7}, s97")
    a(f"s_cmp_lg_u32 s{sW}, 0"); a("s_cbranch_scc1 K1_T1")
    a(f"ds_write_b64 v{t5}, v[{AB+6}:{AB+7}]")
    a.label("K1_T1", flush=False)
    a.barrier()
    a(f"ds_read_b64 v[{AB+6}:{AB+7}], v{t5}")
    a(f"s_lshl_b32 s32, s2, 8"); a(f"s_lshl_b32 s33, s{sW}, 3"); a("s_add_u32 s32, s32, s33"); a(f"s_add_u32 s32, s32, {HFL}")
    a(f"v_mov_b32 v{t6}, 0")
    a(f"v_min_u32 v{RD}, 39, v{la}"); a(f"v_lshlrev_b32 v{RD}, 4, v{RD}"); a(f"s_mul_i32 s33, s{sW}, 640"); a(f"v_add_u32 v{RD}, s33, v{RD}")
    a(f"v_add_u32 v{RD+1}, {SCR}, v{RD}")
    a("s_and_b32 s33, s2, 31"); a("s_lshl_b32 s33, s33, 13"); a(f"s_add_u32 s33, s33, {MPAY}")
    a("s_mov_b32 s37, 0xffff0000")
    a(f"v_readfirstlane_b32 s96, v{AB+6}"); a(f"v_readfirstlane_b32 s97, v{AB+7}")
    reset(); a.nop(5)
    poll("K1_PH", [f"buffer_load_dwordx2 v[{AB+6}:{AB+7}], v{t6}, s[16:19], s32 offen sc1"], [AB+6])
    a.stamp(12)
    for f in range(H0): hload(f)
    PL = 160
    a.vm_done = a.vm_n; a.pend = {}
    poll("K1_PM", [f"buffer_load_dwordx4 v[{PL}:{PL+3}], v{RD}, s[16:19], s33 offen sc1"], [PL+2])
    for f in range(H0, HW): hload(f)
    unpack2(a, PL+4, PL+5, PL, 37); unpack2(a, PL+6, PL+7, PL+1, 37)
    a(f"ds_write_b128 v{RD+1}, v[{PL+4}:{PL+7}]")
    a.barrier()
    a.stamp(4)
    a("s_branch K2_START2")
    a.label("K2_START", flush=False); reset()
    addr_rmw()
    a("s_mov_b32 s45, 0")
    for x in range(NW0):
        d = dma(x); a(d[0]); a(d[1], tok=('s', x))
    a.barrier()
    for f in range(HW): hload(f)
    a.label("K2_START2", flush=False); a.hist = []
    a("s_mov_b32 s37, 0xffff0000")
    a(f"v_mov_b32 v{L0}, 0"); a(f"v_mov_b32 v{L1}, 0")
    a(f"s_cmp_lg_u32 s{sMODE}, 0"); a("s_cbranch_scc1 K2_NOINIT")
    a(f"v_mov_b32 v{MFLOOR}, 0xff800000")
    a.label("K2_NOINIT", flush=False)
    a(f"v_mov_b32 v{VMAX}, 0xff800000")
    mf = []
    def trreads(x, t, b):
        buf = bufof(x); base = (TRL if buf < 4 else TRH) + b; off = (buf % 4) * 16384 + t * 4096
        return lambda A: [f"ds_read_b64_tr_b16 v[{A}:{A+1}], v{base} offset:{off}", f"ds_read_b64_tr_b16 v[{A+2}:{A+3}], v{base} offset:{off+1024}"]
    def kreads(x, blk, t):
        off = bufof(x) * 16384 + blk * 8192 - 65536
        return lambda A: [f"ds_read_b128 v[{A}:{A+3}], v{KR+t} offset:{off}"]
    sblk = lambda n: SB + 16 * (n % 3)
    last = {}
    first_use = {}
    for x, (kind, j) in enumerate(slots):
        if kind == 'W':
            order = [(t, b) for t in range(4) for b in range(4)] if j < 9 else [(t, b) for b in range(4) for t in range(4)]
            for t, b in order:
                D = ACC + 16*b; f = 4*j + t
                mf.append(dict(D=D, B=HB + 4*(f % HW), C=('0' if f == 0 else vr(D, 16)), rd=trreads(x, t, b)))
                last[('Q', b)] = len(mf) - 1; last[('h', f)] = len(mf) - 1
        elif kind == 'K':
            for blk in range(2):
                n = 2*j + blk; D = sblk(n)
                for t in range(8):
                    C = vr(D, 16) if t else ('0' if n < 2 else vr(NM, 16))
                    mf.append(dict(D=D, B=QF + 4*t, C=C, rd=kreads(x, blk, t)))
                    first_use.setdefault(('Qf', t), len(mf) - 1); first_use.setdefault(('Sw', n), len(mf) - 1)
                    if n >= 2 and t == 0: first_use.setdefault('NM', len(mf) - 1)
                last[('S', n)] = len(mf) - 1
        else:
            order = [(t, b) for t in range(4) for b in range(4)]
            if j == 7: order = order[:8] + [(t, b) for b in range(4) for t in (2, 3)]
            for t, b in order:
                D = ACC + 16*b
                mf.append(dict(D=D, B=PB + 16*(j % 2) + 4*t, C=('0' if (j == 0 and t == 0) else vr(D, 16)), rd=trreads(x, t, b)))
                first_use.setdefault(('P', j, t), len(mf) - 1); last[('O', b)] = len(mf) - 1
    N = len(mf); assert N == 416
    Q = []; INF = 10**9; side = []
    def q(text, rel, dl=INF, cost=4): Q.append((text, rel, dl, cost))
    def rmw(x):
        off = bufof(x) * 16384; R = QF + 8 * (x % 4)
        L = [f"ds_read_b32 v{GS+i}, v{GA} offset:{256*x + (2560, 2576, 0, 16)[i]}" for i in range(4)]
        L.append(('gap',))
        for i in range(8):
            h = i // 4; t = TM + 2*(i % 4); ac = T2A + 2*(i % 4); sel = f"op_sel:[0,{h}] op_sel_hi:[1,{h}]"; sel3 = f"op_sel:[0,{h},0] op_sel_hi:[1,{h},1]"
            L.append(f"v_lshlrev_b32 v{t}, 16, v{R+i}"); L.append(f"v_and_b32 v{t+1}, s37, v{R+i}")
            if x == 0 and h == 0: L.append(f"v_pk_mul_f32 v[{ac}:{ac+1}], v[{t}:{t+1}], v[{GS+2}:{GS+3}] {sel}")
            else: L.append(f"v_pk_fma_f32 v[{ac}:{ac+1}], v[{t}:{t+1}], v[{GS+2}:{GS+3}], v[{ac}:{ac+1}] {sel3}")
            L.append(f"v_pk_mul_f32 v[{t}:{t+1}], v[{t}:{t+1}], v[{GS}:{GS+1}] {sel}")
            L.append(f"v_cvt_pk_bf16_f32 v{RD+i}, v{t}, v{t+1}")
            if i % 4 == 3:
                L.append(f"ds_write_b128 v{DV}, v[{RD+4*h}:{RD+4*h+3}] offset:{off+1024*h}")
                if x + 4 < 10: L.append(('wld', x + 4, h))
        if XP == 1 and x > 0: L = [t.replace(f"v[{RD}:{RD+3}]", f"v[{R}:{R+3}]").replace(f"v[{RD+4}:{RD+7}]", f"v[{R+4}:{R+7}]") if isinstance(t, str) else t for t in L if not (isinstance(t, str) and t.startswith('v_'))]
        L.append(('lgtok',))
        return L
    QFD = 64
    RPB = 16*5 + 16 - PF
    def rpk():
        u1, u2, u3 = RP7, RP7B, RP7B + 1
        A = [f"v_bfe_u32 v{u1}, v0, 4, 2", f"v_bfe_u32 v{u2}, v0, 2, 2", f"v_lshl_add_u32 v{u1}, v{u1}, 3, v{u2}", f"v_mul_u32_u24 v{u1}, 1344, v{u1}", f"v_add_u32 v{u1}, s43, v{u1}",
             f"v_and_b32 v{u3}, 3, v0", f"v_lshl_add_u32 v{RP5}, v{u3}, 4, v{u1}", f"v_lshl_add_u32 v{RP6}, v{u3}, 3, v{u1}",
             "s_cmp_eq_u32 s44, 1", "s_cselect_b64 vcc, -1, 0", "s_cselect_b32 s32, 0, 0x40000000", f"v_cndmask_b32 v{RP4}, v{RP6}, v{RP5}, vcc",
             f"s_cmp_lt_u32 s{sW}, s45", "s_cselect_b32 s33, 0, 0x40000000", f"s_cmp_lt_u32 s2, {NUNIT}", "s_cselect_b32 s33, s33, 0x40000000",
             f"v_or_b32 v{RP7}, s33, v{L16}", f"v_or_b32 v{RP7B}, s32, v{RP7}"]
        L = []
        for b in range(7):
            va, off = [(RP5, 0), (RP5, 8), (RP5, 64), (RP5, 72), (RP4, 128), (RP5, 136), (RP6, 192)][b]
            L.append(f"ds_read_b64_tr_b16 v[{QFD+4*b}:{QFD+4*b+1}], v{va} offset:{off}")
            L.append(f"ds_read_b64_tr_b16 v[{QFD+4*b+2}:{QFD+4*b+3}], v{va} offset:{off+5376}")
        L.append(('lgtok',)); L.append(('gap',))
        for b in range(7): L.append(f"buffer_store_dwordx4 v[{QFD+4*b}:{QFD+4*b+3}], v{RP7 if b < 5 else RP7B}, s[16:19], s{42 if b < 4 else 47} offen offset:{1024*(b & 3)} {RSC}")
        return A, L
    def rawaddr(i0, sh=0):
        x1, x2 = T2, TX
        return ([f"v_add_u32 v{x1}, {i0}, v0"] if not sh else [f"v_lshlrev_b32 v{x1}, {sh}, v0"]) + [f"v_min_u32 v{x1}, 2687, v{x1}",
                f"v_mul_u32_u24 v{x2}, 3121, v{x1}", f"v_lshrrev_b32 v{x2}, 18, v{x2}", f"v_lshlrev_b32 v{x1}, 4, v{x1}",
                f"v_mad_i32_i24 v{T3}, v{x2}, s41, v{x1}", f"v_add_u32 v{T3}, s40, v{T3}"]
    RMW0 = rmw(0)
    RA_, RL_ = rpk()
    RQ = [(t, RPB - 14, INF, 2) for t in RA_]
    rds = [t for t in RL_ if isinstance(t, str) and t.startswith('ds_')]; sts = [t for t in RL_ if isinstance(t, str) and t.startswith('buffer_')]
    for b in range(7):
        r = last[('h', 24 + b)] + 3
        RQ += [(rds[2*b], r, INF, 4), (rds[2*b+1], r, INF, 4), (sts[b], r + 3, INF, 8)]
    RQ.sort(key=lambda t: t[1])
    for x in range(1, 10):
        r = max(0, 16*(x-1) - PF + 1); dl = 16*x - PF
        L = rmw(x)
        if x == 9:
            L = L[:-1]
            for e in range(4): L += [f"v_permlane32_swap_b32 v{T2A+e}, v{T2A+e+4}"]
            L += [f"v_and_b32 v{TM}, 15, v0", f"v_lshlrev_b32 v{TM}, 5, v{TM}", f"v_bfe_u32 v{TM+1}, v0, 4, 2", f"v_lshl_add_u32 v{TM}, v{TM+1}, 3, v{TM}"]
            for e in range(4): L += [f"v_add_f32 v{T2A+e}, v{T2A+e}, v{T2A+e+4}"]
            L += [f"v_add_u32 v{TM}, {T2P}, v{TM}", f"s_lshr_b32 s32, s{sM0}, 2", f"v_add_u32 v{TM+1}, s32, v{TM}"]
            for e in range(2): L += [f"v_permlane16_swap_b32 v{T2A+e}, v{T2A+e+2}"]
            L += [f"v_bfe_u32 v{TX}, v0, 5, 1", f"v_lshlrev_b32 v{TX}, 5, v{TX}"]
            for e in range(2): L += [f"v_add_f32 v{T2A+e}, v{T2A+e}, v{T2A+e+2}"]
            L += [f"ds_write_b64 v{TM+1}, v[{T2A}:{T2A+1}]", ('lgtok',), f"s_add_u32 s32, s32, {T2T}", f"v_add_u32 v{TX}, s32, v{TX}"]
        k = 0
        for t in L:
            if t == ('gap',): r += 2
            else:
                while RQ and RQ[0][1] <= r + k // 5: q(*RQ.pop(0))
                q(t, r, dl); k += 1
    assert not RQ
    r = 16*9 - PF + 1
    for w in range(8): q(f"ds_read_b64 v[{T2A+2*w if w < 6 else RD+2*w-12}:{(T2A+2*w if w < 6 else RD+2*w-12)+1}], v{TM} offset:{512*w}", r + w // 4)
    r += 4
    for d, e in ((T2A, T2A+2), (T2A+4, T2A+6), (T2A+8, T2A+10), (RD, RD+2), (T2A, T2A+4), (RD, T2A+8), (T2A, RD)):
        q(f"v_pk_add_f32 v[{d}:{d+1}], v[{d}:{d+1}], v[{e}:{e+1}]", r)
    q(f"v_mul_f32 v{T2A}, s{sSC}, v{T2A}", r); q(f"v_mul_f32 v{T2A+1}, s{sSC}, v{T2A+1}", r)
    q(f"ds_write_b64 v{TM+1}, v[{T2A}:{T2A+1}] offset:4096", r)
    t2r = lambda t: (96, 104, 112, 120, 64, 72, 80, 88)[t]
    for t in range(8):
        for h in range(2): q(f"ds_read_b128 v[{t2r(t)+4*h}:{t2r(t)+4*h+3}], v{TX} offset:{64*t+16*h}", 16*9 - PF + 8 + t // 2, first_use[('Qf', 0)])
    for b in range(4):
        r = last[('Q', b)] + 1
        for i1 in range(2):
            t = 2*b + i1; s = ACC + 16*b + 8*i1; dl = first_use[('Qf', t)]
            for e in range(8): q(f"v_fma_f32 v{s+e}, v{s+e}, s{sSC}, v{t2r(t)+e}", r, dl)
            for e in range(4): q(f"v_cvt_pk_bf16_f32 v{QF+4*t+e}, v{s+2*e}, v{s+2*e+1}", r, dl)
    for n in range(16):
        S = sblk(n); r = last[('S', n)] + 1; j = n // 2; P = PB + 16*(j % 2) + 8*(n % 2)
        dlw = first_use.get(('Sw', n+3), INF)
        if n == 0:
            dl = first_use['NM']
            q(f"v_max3_f32 v{T0}, v{S}, v{S+1}, v{S+2}", r, dl); q(f"v_max3_f32 v{T1}, v{S+3}, v{S+4}, v{S+5}", r, dl)
            for e in range(6, 14, 4):
                q(f"v_max3_f32 v{T0}, v{T0}, v{S+e}, v{S+e+1}", r, dl); q(f"v_max3_f32 v{T1}, v{T1}, v{S+e+2}, v{S+e+3}", r, dl)
            q(f"v_max3_f32 v{T0}, v{T0}, v{S+14}, v{S+15}", r, dl)
            q(f"v_max3_f32 v{T0}, v{T0}, v{T1}, v{MFLOOR}", r, dl)
            q(f"v_mov_b32 v{T1}, v{T0}", r, dl)
            q(f"v_permlane32_swap_b32 v{T0}, v{T1}", r, dl)
            q(f"v_max_f32 v{T0}, v{T0}, v{T1}", r, dl)
            q(f"v_cndmask_b32_e64 v{T0}, v{T0}, 0, s[34:35]", r, dl)
            for e in range(16): q(f"v_sub_f32 v{NM+e}, 0, v{T0}", r, dl)
        q(('side', n), r, min(first_use[('P', j, 2*(n % 2))], dlw), 4)
        ops = []
        for i in range(8):
            dl = min(first_use[('P', j, 2*(n % 2) + i // 4)], dlw)
            if n < 2:
                q(f"v_sub_f32 v{S+2*i}, v{S+2*i}, v{T0}", r, dl); q(f"v_sub_f32 v{S+2*i+1}, v{S+2*i+1}, v{T0}", r, dl)
            q(f"v_exp_f32 v{S+2*i}, v{S+2*i}", r, dl, 8); q(f"v_exp_f32 v{S+2*i+1}, v{S+2*i+1}", r, dl, 8)
            if i > 0 and i != 4:
                k = i - 1
                q(f"v_cvt_pk_bf16_f32 v{P+k}, v{S+2*k}, v{S+2*k+1}", r, dl)
                q(f"v_add_f32 v{L0}, v{L0}, v{S+2*k}", r, dl); q(f"v_add_f32 v{L1}, v{L1}, v{S+2*k+1}", r, dl)
            if i in (3, 7):
                q(f"v_add_f32 v{L0}, v{L0}, v{S+2*i}", r, dl)
                q(f"v_cvt_pk_bf16_f32 v{P+i}, v{S+2*i}, v{S+2*i+1}", r, dl)
                q(f"v_add_f32 v{L1}, v{L1}, v{S+2*i+1}", r, dl)
    r = last[('S', 15)] + 1
    ZA, CK = SB, SB + 4
    q(f"v_add_f32 v{L0}, v{L0}, v{L1}", r); q(f"v_mov_b32 v{L1}, v{L0}", r)
    for e in range(4): q(f"v_mov_b32 v{ZA+e}, 0", r)
    q(f"v_permlane32_swap_b32 v{L0}, v{L1}", r); q(f"v_add_f32 v{L0}, v{L0}, v{L1}", r)
    q(f"v_rcp_f32 v{L1}, v{L0}", r, INF, 8)
    q(f"v_cmp_nlt_f32_e64 s[32:33], v{L0}, s36", r)
    for b in range(4):
        r = last[('O', b)] + 1
        for i1 in range(2):
            s = ACC + 16*b + 8*i1; d = QF + 8*b + 4*i1
            for e in range(8): q(f"v_mul_f32 v{s+e}, v{L1}, v{s+e}", r)
            for e in range(4): q(f"v_cvt_pk_bf16_f32 v{d+e}, v{s+2*e}, v{s+2*e+1}", r)
            k = 2*b + i1
            q(f"buffer_store_dwordx4 v[{d}:{d+3}], v{L16}, s[16:19], s{sO if k < 4 else sO2} offen offset:{1024*(k % 4)} {OSC}", r, INF, 8)
            q(f"v_mfma_f32_16x16x32_bf16 v[{CK}:{CK+3}], v[{ZA}:{ZA+3}], v[{d}:{d+3}], {'0' if k == 0 else vr(CK, 4)}", r, INF, 8)
    a(f"s_mov_b32 s36, {f32(2.0**100)}")
    qi = 0
    def wld(t):
        r = QF + 8 * (t[1] % 4) + 4 * t[2]
        a(f"s_mov_b32 s{sD}, {t[1]*524288}"); a(f"buffer_load_dwordx4 v[{r}:{r+3}], v{DWQ0 + t[2]}, s[4:7], s{sD} offen")
    def emit_q():
        nonlocal qi
        text = Q[qi][0]; qi += 1
        if isinstance(text, tuple) and text[0] == 'tok': a.wait_tok(text[1])
        elif isinstance(text, tuple) and text[0] == 'lgtok': a.lgtok = a.lg_n
        elif isinstance(text, tuple) and text[0] == 'wld': wld(text)
        elif isinstance(text, tuple):
            n = text[1]
            a(f"s_cmp_eq_u32 s{sMODE}, 1"); a(f"s_cbranch_scc1 K2_SIDE{n}"); a.label(f"K2_BACK{n}", flush=False)
            side.append(n)
        elif text.startswith("s_nop"): a.nop(int(text.split()[1]) + 1)
        else: a(text)
    issue_at = {}
    occ = {b: -1 for b in range(8)}; occ[6] = occ[7] = 7
    a.rawm = {}
    for x in range(len(slots)):
        b = bufof(x)
        if x >= 10: issue_at.setdefault(max(occ[b] + 1, x - 7, KIS), []).append(x)
        occ[b] = x
    for jj in range(6): issue_at.setdefault(jj // 2, []).insert(jj % 2, ('raw', jj))
    for t in RMW0:
        if isinstance(t, str): a(t)
        elif t[0] == 'wld': wld(t)
    a.barrier()
    a.lgtok = 0
    a.stamp(2)
    a.stamp(3); a.stamp(10, True)
    def reads(m):
        A = AB + 4 * (m % NB)
        for t in mf[m]['rd'](A): a(t)
    for m in range(PF): reads(m)
    pend_dma = []
    hnext = HW
    log = []
    for m in range(N):
        a.curm = m
        lastdl = max([i for i in range(qi, len(Q)) if Q[i][2] <= m], default=-1)
        forced = 0
        while qi <= lastdl:
            assert Q[qi][1] <= m, (m, Q[qi])
            emit_q(); forced += 1
        I = mf[m]; A = AB + 4 * (m % NB)
        a(f"v_mfma_f32_32x32x16_bf16 {vr(I['D'],16)}, {vr(A,4)}, {vr(I['B'],4)}, {I['C']}")
        s, p = divmod(m, 16)
        if m in STM: a.stamp(STM[m], True)
        if p == 16 - PF and s + 1 < len(slots):
            if s + 1 >= 10: a.wait_tok(('s', s + 1))
            if m == RPB: a.wait_tok(('rp', 5))
            a.wait(lg=a.lg_n - a.lgtok); a("s_barrier")
            for x in issue_at.get(s, []): pend_dma.append(x)
        if m + PF < N: reads(m + PF)
        budget = CAP
        if pend_dma and p in ((17 - PF) % 16, (19 - PF) % 16, (21 - PF) % 16, (23 - PF) % 16):
            x = pend_dma[0]
            if isinstance(x, int):
                d = dma(x); a(d[0]); pend_dma[0] = (x, d[1])
            elif x[0] in ('touch', 'raw'):
                for t in (rawaddr(0, 3) if x[0] == 'touch' else rawaddr(512*x[1])): a(t)
                pend_dma[0] = (x[0] + '2', x[1]); budget -= 20
            elif x[0] == 'touch2':
                a(f"buffer_load_dword v{T1}, v{T3}, s[56:59], 0 offen"); a.pend.pop(("v", T1), None); pend_dma.pop(0)
            elif x[0] == 'raw2':
                a(f"s_add_u32 m0, s46, {8192*x[1]}")
                a(f"buffer_load_dwordx4 v{T3}, s[56:59], 0 offen lds", tok=('rp', x[1])); a.rawm[x[1]] = m; pend_dma.pop(0)
            else:
                d = dma(x[0]); a(d[1], tok=('s', x[0])); pend_dma.pop(0)
            budget -= 8
        if hnext < 40 and hnext - HW <= (m - 3) // 4 and (m % 2 == 1):
            hload(hnext); hnext += 1; budget -= 4
        ne = 0
        while qi < len(Q) and Q[qi][1] <= m and budget > 0:
            t = Q[qi][0]
            if isinstance(t, str) and not t.startswith("s_nop") and a.probe(t)[0] > 0: break
            budget -= Q[qi][3]; emit_q(); ne += 1
        log.append((m, forced, ne))
    while qi < len(Q): emit_q()
    a.k2log = log; print("raw dma at", a.rawm, "dma issue", issue_at)
    a.stamp(9); a.stamp(11, True)
    a(f"v_cmp_u_f32_e64 s[38:39], v{CK}, v{CK}")
    a("s_or_b64 s[32:33], s[32:33], s[38:39]")
    a("s_cmp_lg_u64 s[32:33], 0"); a("s_cselect_b32 s32, 1, 0")
    a(f"s_lshl_b32 s33, s{sW}, 2"); a(f"s_add_u32 s33, s33, {FLAG}")
    a(f"v_mov_b32 v{T2}, s32"); a(f"v_mov_b32 v{T3}, s33")
    a(f"ds_write_b32 v{T3}, v{T2}")
    a.barrier()
    a(f"s_cmp_eq_u32 s{sMODE}, 2"); a("s_cbranch_scc1 K2_FIN")
    a(f"s_cmp_eq_u32 s{sMODE}, 1"); a("s_cbranch_scc1 K2_TO2")
    a(f"v_bfe_u32 v{T3}, v{L16}, 2, 5"); a(f"v_add_u32 v{T3}, {FLAG}, v{T3}")
    a(f"ds_read_b32 v{T2}, v{T3}")
    a(f"v_cmp_ne_u32_e64 s[32:33], 0, v{T2}")
    a("s_cmp_eq_u64 s[32:33], 0"); a("s_cbranch_scc1 K2_FIN")
    a(f"s_mov_b32 s{sMODE}, 1"); a("s_mov_b64 s[34:35], -1")
    a.wait(vm=0); a.flush()
    a("s_branch K2_START")
    a.label("K2_TO2", flush=False)
    a(f"v_mov_b32 v{T1}, v{VMAX}"); a.nop(2)
    a(f"v_permlane32_swap_b32 v{VMAX}, v{T1}"); a(f"v_max_f32 v{MFLOOR}, v{VMAX}, v{T1}")
    a(f"s_mov_b32 s{sMODE}, 2"); a("s_mov_b64 s[34:35], 0")
    a.raw("  s_waitcnt vmcnt(0) lgkmcnt(0)"); a.nop(8)
    a("s_branch K2_START")
    for n in side:
        S = sblk(n)
        a.label(f"K2_SIDE{n}", flush=False); a.hist = []
        a.nop(16)
        for e in range(0, 16, 2): a(f"v_max3_f32 v{VMAX}, v{VMAX}, v{S+e}, v{S+e+1}")
        a.nop(8)
        a(f"s_branch K2_BACK{n}")
    a.label("K2_FIN", flush=False)
    a.dump(16, 2, 14)
    a.label("K2_END", flush=False)
    a("s_endpgm")
    return dict(name="k1_kernel", asm=a, grid=NWG, block=512, lds=T2T + 4096, vgprs=256)
```

```python
from common import *
def gen_k35(which, PD=6, SC=None, IL=1, XP=0, P0=3):
    a = Asm()
    K3 = which == 3
    if SC is None: SC = 'sc1' if K3 else ''
    nm = f"K{which}"
    NKS = 128 if K3 else 54
    CSEG = 512 if K3 else 224
    ACT, WP = (OBUF, WOP) if K3 else (UBUF, W2P)
    NST = 32 if K3 else 14
    MK = 30
    sW, sCT, sTT, sA, sB = 20, 21, 22, 23, 24
    VB, VA0, VA1, VWR, VRD, VE0, VE1, VE2 = 1, 5, 6, 7, 10, 11, 12, 13
    EP = 16
    ACC = 80
    BUF = 160
    a(f"s_cmp_ge_u32 s2, 256"); a(f"s_cbranch_scc1 {nm}_END")
    a.stamp(0, True); a.stamp(1)
    load_srds(a, [(16, KA_WS), (4, KA_X if K3 else KA_OUT)] + ([] if K3 else [(8, KA_B2)]))
    a(f"s_mov_b32 s{MK}, 0xffff0000")
    if STAMPS: a.wait(lg=0); a.stamp(8)
    a(f"v_readfirstlane_b32 s{sW}, v0"); a(f"s_lshr_b32 s{sW}, s{sW}, 6")
    a(f"s_and_b32 s{sTT}, s2, 7"); a(f"s_lshl_b32 s{sTT}, s{sTT}, 2"); a("s_bfe_u32 s25, s2, 0x20003"); a(f"s_add_u32 s{sTT}, s{sTT}, s25")
    a(f"s_lshr_b32 s{sCT}, s2, 5")
    if K3: a(f"s_lshl_b32 s25, s{sW}, 5")
    else:
        a(f"s_mul_i32 s25, s{sW}, 13"); a(f"s_cmp_ge_u32 s{sW}, 1"); a("s_addc_u32 s25, s25, 0")
    a(f"s_mul_i32 s{sA}, s{sCT}, {NKS}"); a(f"s_add_u32 s{sA}, s{sA}, s25"); a(f"s_mul_i32 s{sA}, s{sA}, 5120"); a(f"s_add_u32 s{sA}, s{sA}, {WP}")
    a(f"s_mul_i32 s{sB}, s{sTT}, {2*CSEG*512}"); a("s_lshl_b32 s26, s25, 11"); a(f"s_add_u32 s{sB}, s{sB}, s26"); a(f"s_add_u32 s{sB}, s{sB}, {ACT}")
    la, g, tk = 14, 15, 16
    a(f"v_and_b32 v{la}, 63, v0"); a(f"v_lshrrev_b32 v{g}, 4, v{la}"); a(f"v_and_b32 v{tk}, 15, v0")
    a(f"v_lshlrev_b32 v{VA0}, 4, v{la}"); a(f"v_add_u32 v{VA1}, 4096, v{VA0}")
    a(f"v_lshlrev_b32 v17, 9, v{g}"); a(f"v_lshl_add_u32 v17, v{tk}, 4, v17")
    for tb in range(4):
        a(f"s_add_u32 s26, s{sW}, {tb}"); a("s_and_b32 s26, s26, 3")
        a("s_lshr_b32 s27, s26, 1"); a(f"s_mul_i32 s27, s27, {CSEG*512}"); a("s_and_b32 s28, s26, 1"); a("s_lshl_b32 s28, s28, 8"); a("s_add_u32 s27, s27, s28")
        a(f"v_add_u32 v{VB+tb}, s27, v17")
        if tb:
            a(f"s_mul_i32 s26, s26, 15360"); a(f"s_add_u32 s26, s26, {5120*(tb-1)}")
            a(f"v_add_u32 v{VWR+tb-1}, s26, v{VA0}")
    if not K3:
        a(f"s_cmp_ge_u32 s{sW}, 2"); a("s_cselect_b32 s26, 0x40000000, 0")
        a(f"v_add_u32 v{VE2}, s26, v{VA0}"); a(f"v_add_u32 v{VE1}, s26, v{VA1}")
    ar = lambda r, n: f"a[{r}:{r+n-1}]"
    RING = PD + 1 if IL else PD
    def loadl(k):
        r = 36 * (k % RING); kk = k % 2 if XP else k
        sa, sb = 32 + 2 * (k % 2), 33 + 2 * (k % 2)
        L = []
        for b in range(5):
            if not K3 and k == 0:
                L.append(f"buffer_load_dwordx4 a[{r+16+4*b}:{r+19+4*b}], v{VE2 if b < 4 else VE1}, s[16:19], s{sa} offen offset:{1024*(b % 4)}")
            else:
                L.append(f"buffer_load_dwordx4 a[{r+16+4*b}:{r+19+4*b}], v{VA0 if b < 4 else VA1}, s[16:19], s{sa} offen offset:{1024*(b % 4)}")
            if b < 4: L.append(f"buffer_load_dwordx4 a[{r+4*b}:{r+4*b+3}], v{VB+b}, s[16:19], s{sb} offen")
        L[0] = [f"s_add_u32 s{sa}, s{sA}, {5120*kk}", f"s_add_u32 s{sb}, s{sB}, {2048*kk}", L[0]]
        return [(k, t if isinstance(t, list) else [t]) for t in L]
    def loads(k):
        for _, t in loadl(k):
            for u in t: a(u)
    LQ = [t for k in range(P0, NST) for t in loadl(k)] if IL else []
    for k in range(min(P0 if IL else PD, NST)):
        loads(k)
        if k == 0: a.stamp(9)
    a(f"s_mul_i32 s26, s{sW}, 15360"); a(f"v_add_u32 v{VRD}, s26, v{VA0}")
    if K3:
        TA, TB, TD, TV = 160, 180, 200, 204
        a("s_mul_i32 s41, s2, 9363"); a("s_lshr_b32 s41, s41, 16"); a("s_mul_i32 s42, s41, 7"); a("s_sub_u32 s42, s2, s42")
        a("s_mul_i32 s43, s41, 143360"); a(f"s_mul_i32 s44, s{sW}, {5*7168}"); a("s_add_u32 s43, s43, s44"); a("s_lshl_b32 s44, s42, 10"); a("s_add_u32 s43, s43, s44"); a(f"s_add_u32 s43, s43, {W1P}")
        a("s_cmp_lt_u32 s2, 112"); a("s_cselect_b32 s44, 0, 0x40000000")
        a(f"v_add_u32 v{TV}, s44, v{VA0}")
        a(f"v_and_b32 v{TV+1}, 1, v0"); a(f"v_mul_u32_u24 v{TV+1}, 1280, v{TV+1}"); a(f"v_sub_u32 v{TV+1}, 5120, v{TV+1}"); a(f"v_lshl_add_u32 v{TV+1}, v{g}, 4, v{TV+1}")
        a(f"s_mul_i32 s45, s{sW}, 320"); a(f"s_add_u32 s45, s45, {MODB}")
        for i in range(5):
            a(f"buffer_load_dwordx4 v[{TA+4*i}:{TA+4*i+3}], v{TV}, s[16:19], s43 offen")
            a(f"buffer_load_dwordx4 v[{TB+4*i}:{TB+4*i+3}], v{TV+1}, s[16:19], s45 offen offset:{64*i}")
            if i < 4: a("s_add_u32 s43, s43, 7168")
        a("s_lshr_b32 s46, s42, 1"); a("s_lshl_b32 s46, s46, 7"); a("s_and_b32 s47, s42, 1"); a("s_lshl_b32 s47, s47, 4"); a("s_add_u32 s46, s46, s47")
        a("s_cmp_lt_u32 s42, 6"); a("s_cselect_b32 s47, 5, 4")
        a("s_mul_i32 s41, s41, 448"); a("s_add_u32 s46, s46, s41"); a(f"s_mul_i32 s41, s{sW}, 14336"); a("s_add_u32 s46, s46, s41"); a(f"s_add_u32 s46, s46, {T12P}")
        a(f"v_lshlrev_b32 v{TV+2}, s47, v{g}"); a(f"v_mul_u32_u24 v{TV+3}, 7168, v{tk}"); a(f"v_add3_u32 v{TV+2}, v{TV+2}, v{TV+3}, s44")
        a(f"v_cmp_gt_u32 vcc, 2, v{tk}"); a(f"v_bfrev_b32 v{TV+3}, 2"); a(f"v_cndmask_b32 v{TV+2}, v{TV+3}, v{TV+2}, vcc")
    a(f"s_lshl_b32 s26, s{sTT}, 6"); a(f"s_lshl_b32 s27, s{sW}, 4"); a("s_add_u32 s26, s26, s27")
    a(f"s_mul_i32 s27, s{sCT}, 160")
    a("s_mul_i32 s36, s26, 1280"); a("s_add_u32 s36, s36, s27")
    a("s_lshr_b32 s28, s26, 5"); a("s_mul_i32 s28, s28, 40960"); a(f"s_mul_i32 s29, s{sCT}, 5120"); a("s_add_u32 s28, s28, s29")
    a("s_and_b32 s29, s26, 16"); a("s_lshl_b32 s29, s29, 4"); a("s_add_u32 s28, s28, s29")
    a(f"s_add_u32 s37, s28, {X1B}"); a(f"s_add_u32 s38, s28, {Y2B}")
    a(f"s_mul_i32 s39, s{sCT}, 320")
    RM0, RM4, FR0, FR4, MF0, MF4 = 17, 18, 19, 20, 21, 22
    a(f"v_mul_u32_u24 v{RM4}, 1280, v{tk}"); a(f"v_lshl_add_u32 v{RM0}, v{g}, 4, v{RM4}"); a(f"v_lshl_add_u32 v{RM4}, v{g}, 3, v{RM4}")
    a(f"v_lshlrev_b32 v{FR0}, 9, v{g}"); a(f"v_lshl_add_u32 v{FR0}, v{tk}, 4, v{FR0}")
    a(f"v_lshrrev_b32 v{FR4}, 1, v{g}"); a(f"v_lshlrev_b32 v{FR4}, 9, v{FR4}"); a(f"v_lshl_add_u32 v{FR4}, v{tk}, 4, v{FR4}")
    a(f"v_and_b32 v23, 1, v{g}"); a(f"v_lshl_add_u32 v{FR4}, v23, 3, v{FR4}"); a(f"v_add_u32 v{FR4}, 4096, v{FR4}")
    a(f"v_lshlrev_b32 v{MF0}, 5, v{g}"); a(f"v_lshlrev_b32 v{MF4}, 4, v{g}")
    XI, G1, G2 = 24, 36, 56
    def eploads():
        if K3:
            a(f"buffer_load_dwordx4 v[{XI}:{XI+3}], v{RM0}, s[4:7], s36 offen"); a(f"buffer_load_dwordx4 v[{XI+4}:{XI+7}], v{RM0}, s[4:7], s36 offen offset:64")
            a(f"buffer_load_dwordx2 v[{XI+8}:{XI+9}], v{RM4}, s[4:7], s36 offen offset:128")
        else:
            a(f"buffer_load_dwordx4 v[{XI}:{XI+3}], v{FR0}, s[16:19], s37 offen"); a(f"buffer_load_dwordx4 v[{XI+4}:{XI+7}], v{FR0}, s[16:19], s37 offen offset:2048")
            a(f"buffer_load_dwordx2 v[{XI+8}:{XI+9}], v{FR4}, s[16:19], s37 offen")
        for G, sec in ([(G1, 2), (G2, 4)] if K3 else [(G1, 5)]):
            a(f"s_add_u32 s40, s39, {MODF + 2560*sec}")
            for i, off in enumerate((0, 16, 128, 144)): a(f"buffer_load_dwordx4 v[{G+4*i}:{G+4*i+3}], v{MF0}, s[16:19], s40 offen offset:{off}")
            a(f"buffer_load_dwordx4 v[{G+16}:{G+19}], v{MF4}, s[16:19], s40 offen offset:256")
        if not K3:
            a(f"v_lshlrev_b32 v23, 3, v{g}")
            a(f"buffer_load_dwordx4 v[{G2}:{G2+3}], v{MF4}, s[8:11], s27 offen"); a(f"buffer_load_dwordx4 v[{G2+4}:{G2+7}], v{MF4}, s[8:11], s27 offen offset:64")
            a(f"buffer_load_dwordx2 v[{G2+8}:{G2+9}], v23, s[8:11], s27 offen offset:128")
    acc = lambda tb, b: ACC + 4 * (5 * tb + b)
    a.stamp(2)
    for k in range(NST):
        r = 36 * (k % RING)
        if k == 1: a.stamp(3)
        if k == NST // 2: a.stamp(4)
        order = [(tb, b) for b in range(5) for tb in range(4)]
        if k == NST - 1: order = [(tb, b) for tb in (1, 2, 3, 0) for b in range(5)]
        for i, (tb, b) in enumerate(order):
            D = vr(acc(tb, b), 4)
            a(f"v_mfma_f32_16x16x32_bf16 {D}, {ar(r+16+4*b,4)}, {ar(r+4*tb,4)}, {'0' if k == 0 else D}")
            if LQ and LQ[0][0] <= k + PD and (i % 2 == 1 or LQ[0][0] < k + PD):
                for u in LQ.pop(0)[1]: a(u)
            if k == NST - 1 and i >= 7 and i < 22 and i - 7 < 15:
                j = i - 7; tb2, b2 = 1 + j // 5, j % 5
                a(f"ds_write_b128 v{VWR+tb2-1}, {vr(acc(tb2, b2), 4)} offset:{1024*b2}")
        if k + PD < NST and not IL: loads(k + PD)
        if K3 and k == 8:
            for i in range(5): a(f"v_mfma_f32_16x16x32_bf16 v[{TD}:{TD+3}], v[{TA+4*i}:{TA+4*i+3}], v[{TB+4*i}:{TB+4*i+3}], {'0' if i == 0 else vr(TD, 4)}")
        if K3 and k == 9: a(f"buffer_store_dwordx4 v[{TD}:{TD+3}], v{TV+2}, s[16:19], s46 offen {SC}")
        if k == max(0, NST - PD - 1): eploads()
    for j in (13, 14): a(f"ds_write_b128 v{VWR+2}, {vr(acc(3, j % 5), 4)} offset:{1024*(j % 5)}")
    a.stamp(5)
    a.barrier()
    a.stamp(6)
    R = BUF
    for i in range(3):
        for b in range(5): a(f"ds_read_b128 {vr(R+20*i+4*b, 4)}, v{VRD} offset:{5120*i+1024*b}")
    for i in range(3):
        for e in range(20): a(f"v_add_f32 v{ACC+e}, v{ACC+e}, v{R+20*i+e}")
    T, U, W = 100, 120, 140
    S1, S2 = 150, 151
    for i in range(10):
        x, y = ACC + 2*i, ACC + 2*i + 1
        rnd2(a, x, y, T, MK)
        if not K3:
            unpack2(a, U, U+1, G2+i, MK)
            a(f"v_add_f32 v{x}, v{x}, v{U}"); a(f"v_add_f32 v{y}, v{y}, v{U+1}")
            rnd2(a, x, y, T, MK)
        a(f"v_mul_f32 v{x}, v{x}, v{G1+2*i}"); a(f"v_mul_f32 v{y}, v{y}, v{G1+2*i+1}")
        rnd2(a, x, y, T, MK)
        unpack2(a, U, U+1, XI+i, MK)
        a(f"v_add_f32 v{x}, v{x}, v{U}"); a(f"v_add_f32 v{y}, v{y}, v{U+1}")
        if K3:
            rnd2(a, x, y, T+2+i, MK)
            if i == 0:
                a(f"v_add_f32 v{S1}, v{x}, v{y}"); a(f"v_mul_f32 v{S2}, v{x}, v{x}")
            else:
                a(f"v_add_f32 v{S1}, v{S1}, v{x}"); a(f"v_fmac_f32 v{S2}, v{x}, v{x}"); a(f"v_add_f32 v{S1}, v{S1}, v{y}")
            a(f"v_fmac_f32 v{S2}, v{y}, v{y}")
            a(f"v_mul_f32 v{x}, v{x}, v{G2+2*i}"); a(f"v_mul_f32 v{y}, v{y}, v{G2+2*i+1}")
            a(f"v_cvt_pk_bf16_f32 v{W+i}, v{x}, v{y}")
        else:
            a(f"v_cvt_pk_bf16_f32 v{T+2+i}, v{x}, v{y}")
    P = T + 2
    if K3:
        for base, so in ((W, 38), (P, 37)):
            a(f"buffer_store_dwordx4 {vr(base,4)}, v{FR0}, s[16:19], s{so} offen {SC}"); a(f"buffer_store_dwordx4 {vr(base+4,4)}, v{FR0}, s[16:19], s{so} offen offset:2048 {SC}")
            a(f"buffer_store_dwordx2 {vr(base+8,2)}, v{FR4}, s[16:19], s{so} offen {SC}")
        for w in (16, 32):
            xsum_swap(a, S1, U, w); xsum_swap(a, S2, U+1, w)
        a(f"v_lshlrev_b32 v{U}, 3, v{tk}")
        a(f"s_lshl_b32 s26, s{sTT}, 9"); a(f"s_lshl_b32 s27, s{sW}, 7"); a("s_add_u32 s26, s26, s27"); a(f"s_lshl_b32 s27, s{sCT}, 14"); a("s_add_u32 s26, s26, s27")
        a(f"s_add_u32 s26, s26, {STAT}")
        a(f"buffer_store_dwordx2 v[{S1}:{S2}], v{U}, s[16:19], s26 offen {SC}")
    else:
        a(f"buffer_store_dwordx4 {vr(P,4)}, v{RM0}, s[4:7], s36 offen {SC}"); a(f"buffer_store_dwordx4 {vr(P+4,4)}, v{RM0}, s[4:7], s36 offen offset:64 {SC}")
        a(f"buffer_store_dwordx2 {vr(P+8,2)}, v{RM4}, s[4:7], s36 offen offset:128 {SC}")
    a.stamp(7)
    a.dump(16, which, 10)
    a.label(f"{nm}_END", flush=False)
    a("s_endpgm")
    return dict(name=f"k{which}_kernel", asm=a, grid=256, block=256, lds=61440, vgprs=224 + 36 * RING, accum=224)
```

```python
from common import *
def gen_k4(PFA=4, SC='sc1'):
    a = Asm()
    MK = 30
    sW, sCT, sTT, sA, sB, sM0 = 20, 21, 22, 23, 24, 25
    L16, VB, VT = 1, 2, 3
    TL = 143360
    ACC = 32
    AB = 88
    NBA = 8
    EP = 120
    a("s_cmp_ge_u32 s2, 256"); a("s_cbranch_scc1 K4_END")
    a.stamp(0, True); a.stamp(1)
    load_srds(a, [(16, KA_WS), (8, KA_B1)])
    a(f"s_mov_b32 s{MK}, 0xffff0000")
    a(f"v_readfirstlane_b32 s{sW}, v0"); a(f"s_lshr_b32 s{sW}, s{sW}, 6")
    a(f"s_and_b32 s{sTT}, s2, 7"); a(f"s_lshl_b32 s{sTT}, s{sTT}, 1"); a("s_bfe_u32 s26, s2, 0x10003"); a(f"s_add_u32 s{sTT}, s{sTT}, s26")
    a(f"s_lshr_b32 s{sCT}, s2, 4")
    a(f"s_mul_i32 s{sA}, s{sCT}, 143360"); a(f"s_add_u32 s{sA}, s{sA}, {W1P}")
    a(f"s_mul_i32 s{sM0}, s{sW}, 7168"); a(f"s_add_u32 s{sA}, s{sA}, s{sM0}")
    a(f"s_lshl_b32 s26, s{sTT}, 2"); a(f"s_add_u32 s26, s26, s{sW}")
    a(f"s_mul_i32 s{sB}, s26, 40960"); a(f"s_add_u32 s{sB}, s{sB}, {Y2B}")
    la, g, tk = 4, 5, 6
    a(f"v_and_b32 v{la}, 63, v0"); a(f"v_lshrrev_b32 v{g}, 4, v{la}"); a(f"v_and_b32 v{tk}, 15, v0")
    a(f"v_lshlrev_b32 v{L16}, 4, v{la}")
    a(f"v_lshlrev_b32 v{VB}, 9, v{g}"); a(f"v_lshl_add_u32 v{VB}, v{tk}, 4, v{VB}")
    ar = lambda r, n: f"a[{r}:{r+n-1}]"
    def chunk(c):
        for h in range(2):
            a(f"s_add_u32 s27, s{sA}, {28672*c + 4096*h}"); a(f"s_add_u32 m0, s{sM0}, {28672*c + 4096*h}")
            for i in range(4 if h == 0 else 3):
                a(f"buffer_load_dwordx4 v{L16}, s[16:19], s27 offen offset:{1024*i} lds", tok=('c', c))
    def bl(ks):
        if ks % 2 == 0: a(f"s_add_u32 s28, s{sB}, {2048*ks}")
        for tb in range(2): a(f"buffer_load_dwordx4 {ar(8*ks+4*tb, 4)}, v{VB}, s[16:19], s28 offen offset:{2048*(ks % 2) + 256*tb}")
    chunk(0)
    for ks in range(4): bl(ks)
    chunk(1)
    for ks in range(4, 8): bl(ks)
    a("v_cmp_lt_u32 vcc, 111, v0"); a(f"v_cndmask_b32 v7, 0, v0, vcc"); a(f"v_mov_b32 v8, {7168-448}"); a("v_cndmask_b32 v7, 0, v8, vcc")
    a("v_lshl_add_u32 v7, v0, 2, v7")
    a("v_cmp_lt_u32 vcc, 223, v0"); a("v_mov_b32 v8, 0x40000000"); a("v_cndmask_b32 v7, v7, v8, vcc")
    a(f"s_mul_i32 s29, s{sCT}, 448"); a(f"s_add_u32 s29, s29, {T12P}")
    for i in range(4):
        if i: a("s_add_u32 s29, s29, 14336")
        a(f"buffer_load_dword v{EP+i}, v7, s[16:19], s29 offen")
    chunk(2)
    for i in range(1, 4): a(f"v_add_f32 v{EP}, v{EP}, v{EP+i}")
    a(f"v_lshlrev_b32 v8, 2, v0"); a(f"ds_write_b32 v8, v{EP} offset:{TL - 131072}") if False else None
    a(f"v_lshlrev_b32 v8, 2, v0"); a(f"v_add_u32 v8, {TL}, v8"); a(f"ds_write_b32 v8, v{EP}")
    for ks in range(8, 12): bl(ks)
    chunk(3)
    for ks in range(12, 16): bl(ks)
    chunk(4)
    for ks in range(16, 20): bl(ks)
    ST = EP + 20
    a(f"v_lshlrev_b32 v9, 15, v{g}"); a(f"v_lshl_add_u32 v9, v{tk}, 3, v9")
    a("s_lshl_b32 s29, s26, 8"); a(f"s_add_u32 s29, s29, {STAT}"); a("s_add_u32 s31, s29, 16384")
    for tb in range(2):
        a(f"buffer_load_dwordx2 {vr(ST+4*tb, 2)}, v9, s[16:19], s29 offen offset:{128*tb}")
        a(f"buffer_load_dwordx2 {vr(ST+4*tb+2, 2)}, v9, s[16:19], s31 offen offset:{128*tb}")
    B1 = ST + 8
    a(f"v_lshlrev_b32 v10, 4, v{g}"); a(f"v_lshlrev_b32 v11, 3, v{g}")
    a(f"s_mul_i32 s29, s{sCT}, 224"); a("v_add_u32 v10, s29, v10"); a("v_add_u32 v11, s29, v11")
    for p in range(3): a(f"buffer_load_dwordx4 {vr(B1+4*p, 4)}, v10, s[8:11], 0 offen offset:{64*p}")
    a(f"buffer_load_dwordx2 {vr(B1+12, 2)}, v11, s[8:11], 0 offen offset:192")
    a(f"v_add_u32 v12, 0x10000, v{L16}"); a(f"v_add_u32 v13, 0x20000, v{L16}")
    seq = [(ks, b) for ks in range(20) for b in range(7)]
    def rd(i):
        ks, b = seq[i]; off = ks * 7168 + b * 1024
        base = (L16, 12, 13)[off >> 16]
        a(f"ds_read_b128 {vr(AB + 4*(i % NBA), 4)}, v{base} offset:{off & 0xffff}")
    acc = lambda tb, b: ACC + 4 * (7 * tb + b)
    a.stamp(2)
    a.wait_tok(('c', 0)); a.barrier()
    a.stamp(3)
    for i in range(PFA): rd(i)
    for i, (ks, b) in enumerate(seq):
        if i == 70: a.stamp(4)
        for tb in range(2):
            D = vr(acc(tb, b), 4)
            a(f"v_mfma_f32_16x16x32_bf16 {D}, {vr(AB + 4*(i % NBA), 4)}, {ar(8*ks+4*tb, 4)}, {'0' if ks == 0 else D}")
            if tb == 0:
                n = i + PFA
                if n < len(seq):
                    if n % 28 == 0: a.wait_tok(('c', n // 28)); a("s_barrier")
                    rd(n)
    a.stamp(5)
    T1, T2 = 164, 192
    a(f"v_lshlrev_b32 v10, 5, v{g}"); a(f"v_add_u32 v10, {TL}, v10"); a(f"v_lshlrev_b32 v11, 4, v{g}"); a(f"v_add_u32 v11, {TL}, v11")
    for T, o in ((T1, 0), (T2, 448)):
        for b in range(6): a(f"ds_read_b128 {vr(T+4*b, 4)}, v10 offset:{o + 128*(b >> 1) + 16*(b & 1)}")
        a(f"ds_read_b128 {vr(T+24, 4)}, v11 offset:{o + 384}")
    MU, RS = 14, 16
    for tb in range(2):
        s1, s2 = ST + 4*tb, ST + 4*tb + 1
        a(f"v_add_f32 v{s1}, v{s1}, v{s1+2}"); a(f"v_add_f32 v{s2}, v{s2}, v{s2+2}")
        for w in (16, 32): xsum_swap(a, s1, 18, w); xsum_swap(a, s2, 19, w)
        a(f"v_mul_f32 v{s1}, {f32(1/640)}, v{s1}"); a(f"v_mul_f32 v{s2}, {f32(1/640)}, v{s2}")
        a(f"v_fma_f32 v{s2}, -v{s1}, v{s1}, v{s2}"); a(f"v_max_f32 v{s2}, 0, v{s2}")
        rnd2(a, s1, s2, 18, MK)
        a(f"v_add_f32 v{s2}, {f32(1e-5)}, v{s2}"); rnd1(a, s2)
        a(f"v_sqrt_f32 v{s2}, v{s2}"); rnd1(a, s2)
        a(f"v_rcp_f32 v{RS+tb}, v{s2}"); a(f"v_sub_f32 v{MU+tb}, 0, v{s1}")
    BF = 220
    for i in range(14): unpack2(a, BF+2*i, BF+2*i+1, B1+i, MK)
    a(f"v_lshrrev_b32 v18, 1, v{g}"); a("v_lshlrev_b32 v18, 9, v18"); a(f"v_lshl_add_u32 v18, v{tk}, 4, v18"); a(f"v_and_b32 v19, 1, v{g}"); a("v_lshl_add_u32 v18, v19, 3, v18")
    a(f"s_mul_i32 s27, s26, {224*512}"); a(f"s_mul_i32 s28, s{sCT}, 7168"); a("s_add_u32 s27, s27, s28"); a(f"s_add_u32 s27, s27, {UBUF}")
    a("s_add_u32 s28, s27, 4096"); a("s_add_u32 s29, s27, 6144")
    PK = AB
    for tb in range(2):
        for i in range(14):
            x, y = acc(tb, 0) + 2*i, acc(tb, 0) + 2*i + 1
            a(f"v_fmac_f32 v{x}, v{MU+tb}, v{T1+2*i}"); a(f"v_fmac_f32 v{y}, v{MU+tb}, v{T1+2*i+1}")
            a(f"v_fma_f32 v{x}, v{x}, v{RS+tb}, v{T2+2*i}"); a(f"v_fma_f32 v{y}, v{y}, v{RS+tb}, v{T2+2*i+1}")
            rnd2(a, x, y, 19, MK)
            a(f"v_add_f32 v{x}, v{x}, v{BF+2*i}"); a(f"v_add_f32 v{y}, v{y}, v{BF+2*i+1}")
            rnd2(a, x, y, 19, MK)
            a(f"v_max_f32 v{x}, 0, v{x}"); a(f"v_max_f32 v{y}, 0, v{y}")
            a(f"v_mul_f32 v{x}, v{x}, v{x}"); a(f"v_mul_f32 v{y}, v{y}, v{y}")
            d = PK + 16*tb + i
            a(f"v_cvt_pk_bf16_f32 v{d}, v{x}, v{y}")
            if i in (3, 7): a(f"buffer_store_dwordx4 {vr(d-3, 4)}, v{VB}, s[16:19], s27 offen offset:{2048*(i // 4) + 256*tb} {SC}")
            if i == 11: a(f"buffer_store_dwordx4 {vr(d-3, 4)}, v{VB}, s[16:19], s28 offen offset:{256*tb} {SC}")
            if i == 13: a(f"buffer_store_dwordx2 {vr(d-1, 2)}, v18, s[16:19], s29 offen offset:{256*tb} {SC}")
    a.stamp(6)
    a.dump(16, 4, 7)
    a.label("K4_END", flush=False)
    a("s_endpgm")
    return dict(name="k4_kernel", asm=a, grid=256, block=256, lds=143360 + 1024, vgprs=256 + 160, accum=256)
```

```python
import sys
from common import *
from k1 import gen_k1
from k35 import gen_k35
from k4 import gen_k4
from kf import gen_kf
def main(out):
    import json, os
    P = json.loads(os.environ.get('GP', '{}'))
    if P.get('fuse', 1): ks = [gen_k1(ZF=1, **P.get('k1', {})), gen_kf(P.get('k3', {}), P.get('k4', {}), P.get('k5', {}), **P.get('kf', {}))]
    else: ks = [gen_k1(**P.get('k1', {})), gen_k35(3, **P.get('k3', {})), gen_k4(**P.get('k4', {})), gen_k35(5, **P.get('k5', {}))]
    for k in ks: print(k['name'], k['asm'].nins, k['asm'].stats)
    txt = build_file(ks)
    open(out, 'w').write(txt); print(len(txt), "bytes")
    return ks
if __name__ == '__main__':
    ks = main(sys.argv[1] if len(sys.argv) > 1 else 'adaLN_cond__sliding_block_cached__dense_activation_squared_relu__prompt.s')
    log = ks[0]['asm'].k2log
    print("forced:", [(m, f) for m, f, n in log if f])
```

```python
from common import *
class Rec:
    def __init__(self): self.l = []
    def __call__(self, text, tok=None): self.l.append((text, tok))
def gen_k4(PFA=4, SC='sc1', P0=15, LPM=2, MAP=1, FILL=3, TAILF=6, DRY=1):
    a = Asm()
    MK = 30
    sW, sCT, sTT, sA, sB, sM0 = 20, 21, 22, 23, 24, 25
    L16, VB, VT = 1, 2, 3
    TL = 143360
    ACC = 32
    AB = 88
    NBA = 8
    EP = 120
    a("s_cmp_ge_u32 s2, 256"); a("s_cbranch_scc1 K4_END")
    a.stamp(0, True); a.stamp(1)
    load_srds(a, [(16, KA_WS), (8, KA_B1)])
    a(f"s_mov_b32 s{MK}, 0xffff0000")
    a(f"v_readfirstlane_b32 s{sW}, v0"); a(f"s_lshr_b32 s{sW}, s{sW}, 6")
    if MAP == 0:
        a(f"s_and_b32 s{sTT}, s2, 7"); a(f"s_lshl_b32 s{sTT}, s{sTT}, 1"); a("s_bfe_u32 s26, s2, 0x10003"); a(f"s_add_u32 s{sTT}, s{sTT}, s26")
        a(f"s_lshr_b32 s{sCT}, s2, 4")
    else:
        a(f"s_bfe_u32 s{sTT}, s2, 0x20001"); a(f"s_lshl_b32 s{sTT}, s{sTT}, 2"); a("s_bfe_u32 s26, s2, 0x20003"); a(f"s_add_u32 s{sTT}, s{sTT}, s26")
        a(f"s_and_b32 s{sCT}, s2, 1"); a(f"s_lshl_b32 s{sCT}, s{sCT}, 3"); a("s_lshr_b32 s26, s2, 5"); a(f"s_add_u32 s{sCT}, s{sCT}, s26")
    a(f"s_mul_i32 s{sA}, s{sCT}, 143360"); a(f"s_add_u32 s{sA}, s{sA}, {W1P}")
    a(f"s_mul_i32 s{sM0}, s{sW}, 7168"); a(f"s_add_u32 s{sA}, s{sA}, s{sM0}")
    a(f"s_lshl_b32 s26, s{sTT}, 2"); a(f"s_add_u32 s26, s26, s{sW}")
    a(f"s_mul_i32 s{sB}, s26, 40960"); a(f"s_add_u32 s{sB}, s{sB}, {Y2B}")
    la, g, tk = 4, 5, 6
    a(f"v_and_b32 v{la}, 63, v0"); a(f"v_lshrrev_b32 v{g}, 4, v{la}"); a(f"v_and_b32 v{tk}, 15, v0")
    a(f"v_lshlrev_b32 v{L16}, 4, v{la}")
    a(f"v_lshlrev_b32 v{VB}, 9, v{g}"); a(f"v_lshl_add_u32 v{VB}, v{tk}, 4, v{VB}")
    ar = lambda r, n: f"a[{r}:{r+n-1}]"
    U = []
    def chunk(c):
        for h in range(2):
            pre = [(f"s_add_u32 s27, s{sA}, {28672*c + 4096*h}", None), (f"s_add_u32 m0, s{sM0}, {28672*c + 4096*h}", None)]
            for i in range(4 if h == 0 else 3):
                U.append(pre + [(f"buffer_load_dwordx4 v{L16}, s[16:19], s27 offen offset:{1024*i} lds", ('c', c))]); pre = []
    def bl(ks):
        pre = [(f"s_add_u32 s28, s{sB}, {2048*ks}", None)] if ks % 2 == 0 else []
        for tb in range(2):
            U.append(pre + [(f"buffer_load_dwordx4 {ar(8*ks+4*tb, 4)}, v{VB}, s[16:19], s28 offen offset:{2048*(ks % 2) + 256*tb}", None)]); pre = []
    ST = EP + 20
    B1 = ST + 8
    def t12():
        r = Rec()
        r("v_cmp_lt_u32 vcc, 111, v0"); r(f"v_mov_b32 v8, {7168-448}"); r("v_cndmask_b32 v7, 0, v8, vcc")
        r("v_lshl_add_u32 v7, v0, 2, v7")
        r("v_cmp_lt_u32 vcc, 223, v0"); r("v_mov_b32 v8, 0x40000000"); r("v_cndmask_b32 v7, v7, v8, vcc")
        r(f"s_mul_i32 s29, s{sCT}, 448"); r(f"s_add_u32 s29, s29, {T12P}")
        for i in range(4):
            if i: r("s_add_u32 s29, s29, 14336")
            r(f"buffer_load_dword v{EP+i}, v7, s[16:19], s29 offen")
            U.append(r.l); r = Rec()
    def stats():
        r = Rec()
        r(f"v_lshlrev_b32 v9, 15, v{g}"); r(f"v_lshl_add_u32 v9, v{tk}, 3, v9")
        r("s_lshl_b32 s29, s26, 8"); r(f"s_add_u32 s29, s29, {STAT}"); r("s_add_u32 s31, s29, 16384")
        for tb in range(2):
            for h in range(2):
                r(f"buffer_load_dwordx2 {vr(ST+4*tb+2*h, 2)}, v9, s[16:19], s{(29, 31)[h]} offen offset:{128*tb}")
                U.append(r.l); r = Rec()
    def b1l():
        r = Rec()
        r(f"v_lshlrev_b32 v10, 4, v{g}"); r(f"v_lshlrev_b32 v11, 3, v{g}")
        r(f"s_mul_i32 s29, s{sCT}, 224"); r("v_add_u32 v10, s29, v10"); r("v_add_u32 v11, s29, v11")
        for p in range(3):
            r(f"buffer_load_dwordx4 {vr(B1+4*p, 4)}, v10, s[8:11], 0 offen offset:{64*p}"); U.append(r.l); r = Rec()
        r(f"buffer_load_dwordx2 {vr(B1+12, 2)}, v11, s[8:11], 0 offen offset:192"); U.append(r.l)
    for c in range(5):
        if c == 2: t12()
        if c == 3: stats(); b1l()
        chunk(c)
        for ks in range(4*c, 4*c+4): bl(ks)
    def issue(n=1):
        for _ in range(n):
            if U:
                for t, tok in U.pop(0): a(t, tok=tok)
    issue(P0)
    a(f"v_add_u32 v12, 0x10000, v{L16}"); a(f"v_add_u32 v13, 0x20000, v{L16}")
    T1, T2 = 164, 192
    MU, RS = 14, 16
    BF = 220
    f2 = Rec()
    for i in range(1, 4): f2(f"v_add_f32 v{EP}, v{EP}, v{EP+i}")
    f2(f"v_lshlrev_b32 v8, 2, v0"); f2(f"v_add_u32 v8, {TL}, v8"); f2(f"ds_write_b32 v8, v{EP}")
    f3 = Rec()
    a(f"v_lshlrev_b32 v26, 5, v{g}"); a(f"v_add_u32 v26, {TL}, v26"); a(f"v_lshlrev_b32 v27, 4, v{g}"); a(f"v_add_u32 v27, {TL}, v27")
    tr = Rec()
    for T, o in ((T1, 0), (T2, 448)):
        for b in range(6): tr(f"ds_read_b128 {vr(T+4*b, 4)}, v26 offset:{o + 128*(b >> 1) + 16*(b & 1)}")
        tr(f"ds_read_b128 {vr(T+24, 4)}, v27 offset:{o + 384}")
    st = Rec()
    for tb in range(2):
        s1, s2 = ST + 4*tb, ST + 4*tb + 1
        st(f"v_add_f32 v{s1}, v{s1}, v{s1+2}"); st(f"v_add_f32 v{s2}, v{s2}, v{s2+2}")
        for w in (16, 32): xsum_swap(st, s1, 18, w); xsum_swap(st, s2, 19, w)
        st(f"v_mul_f32 v{s1}, {f32(1/640)}, v{s1}"); st(f"v_mul_f32 v{s2}, {f32(1/640)}, v{s2}")
        st(f"v_fma_f32 v{s2}, -v{s1}, v{s1}, v{s2}"); st(f"v_max_f32 v{s2}, 0, v{s2}")
        rnd2(st, s1, s2, 18, MK)
        st(f"v_add_f32 v{s2}, {f32(1e-5)}, v{s2}"); rnd1(st, s2)
        st(f"v_sqrt_f32 v{s2}, v{s2}"); rnd1(st, s2)
        st(f"v_rcp_f32 v{RS+tb}, v{s2}"); st(f"v_sub_f32 v{MU+tb}, 0, v{s1}")
        st(f"v_mul_f32 v{MU+tb}, v{MU+tb}, v{RS+tb}")
    for i, x in enumerate(st.l):
        f3.l.append(x)
        if i % 3 == 2 and tr.l: f3.l.append(tr.l.pop(0))
    f3.l += tr.l
    for i in range(14): unpack2(f3, BF+2*i, BF+2*i+1, B1+i, MK)
    f3(f"v_mov_b32 v24, v{RS+1}"); f3(f"v_mov_b32 v25, v{RS+1}"); f3(f"v_mov_b32 v{RS+1}, v{RS}")
    f3(f"v_sub_f32 v{MU}, v{MU}, v{MU+1}")
    for i in range(28):
        f3(f"v_fmac_f32 v{T2+i}, v{T1+i}, v{MU+1}")
        f3(f"v_fma_f32 v{T1+i}, v{T1+i}, v{MU}, v{T2+i}")
    a(f"v_lshrrev_b32 v28, 1, v{g}"); a("v_lshlrev_b32 v28, 9, v28"); a(f"v_lshl_add_u32 v28, v{tk}, 4, v28"); a(f"v_and_b32 v29, 1, v{g}"); a("v_lshl_add_u32 v28, v29, 3, v28")
    a(f"s_mul_i32 s32, s26, {224*512}"); a(f"s_mul_i32 s33, s{sCT}, 7168"); a("s_add_u32 s32, s32, s33"); a(f"s_add_u32 s32, s32, {UBUF}")
    a("s_add_u32 s33, s32, 4096"); a("s_add_u32 s34, s32, 6144")
    acc = lambda tb, b: ACC + 4 * (7 * tb + b)
    def epi(b):
        ch = []
        for tb in range(2):
            for h in range(2):
                r = Rec(); i = 2*b + h; x = acc(tb, b) + 2*h; t = 20 + 2*tb + h
                E = (T1, T2)[tb] + 2*i
                r(f"v_pk_fma_f32 {vr(x, 2)}, {vr(x, 2)}, {vr((RS, 24)[tb], 2)}, {vr(E, 2)}")
                rnd2(r, x, x+1, t, MK)
                r(f"v_pk_add_f32 {vr(x, 2)}, {vr(x, 2)}, {vr(BF+2*i, 2)}")
                r(f"v_cvt_pk_bf16_f32 v{t}, v{x}, v{x+1}"); r(f"v_pk_max_i16 v{t}, v{t}, 0")
                unpack2(r, x, x+1, t, MK)
                r(f"v_pk_mul_f32 {vr(x, 2)}, {vr(x, 2)}, {vr(x, 2)}")
                r(f"v_cvt_pk_bf16_f32 v{acc(tb, b & ~1) + 2*(b & 1) + h}, v{x}, v{x+1}")
                ch.append(r.l)
        out = [c[k] for k in range(len(ch[0])) for c in ch]
        for tb in range(2):
            d = acc(tb, b & ~1)
            if b in (1, 3): out.append((f"buffer_store_dwordx4 {vr(d, 4)}, v{VB}, s[16:19], s32 offen offset:{2048*(b // 2) + 256*tb} {SC}", None))
            if b == 5: out.append((f"buffer_store_dwordx4 {vr(d, 4)}, v{VB}, s[16:19], s33 offen offset:{256*tb} {SC}", None))
            if b == 6: out.append((f"buffer_store_dwordx2 {vr(d, 2)}, v28, s[16:19], s34 offen offset:{256*tb} {SC}", None))
        return out
    seq = [(ks, b) for ks in range(16) for b in range(7)] + [(ks, b) for b in range(7) for ks in range(16, 20)]
    def rd(i):
        ks, b = seq[i]; off = ks * 7168 + b * 1024
        base = (L16, 12, 13)[off >> 16]
        a(f"ds_read_b128 {vr(AB + 4*(i % NBA), 4)}, v{base} offset:{off & 0xffff}")
    a.stamp(2)
    if DRY:
        a.wait(lg=0)
        a("s_mov_b64 exec, 0")
        for w in range(3): a(f"s_cmp_eq_u32 s{sW}, {w}"); a(f"s_cbranch_scc1 K4_DRY{w}")
        a("s_branch K4_DRY3")
        a.raw("K4_RET:"); a("s_mov_b64 exec, -1"); a.raw("  s_waitcnt lgkmcnt(0)"); a.nop(16)
    dry = {122: 1, 129: 2, 136: 3}
    a.wait_tok(('c', 0)); a.barrier()
    a.stamp(3)
    for i in range(PFA): rd(i)
    F = []; m = 0
    for i, (ks, b) in enumerate(seq):
        if i == 70: a.stamp(4)
        if i == 112:
            while U: issue()
            for t, tok in F: a(t)
            F = []
            a.stamp(5)
        if i > 112 and i % 4 == 0:
            for t, tok in F: a(t)
            F = epi(b - 1)
        if DRY and i in dry: a("s_cbranch_execz K4_RET"); a.raw(f"K4_DRY{dry[i]}:")
        for tb in range(2):
            D = vr(acc(tb, b), 4)
            a(f"v_mfma_f32_16x16x32_bf16 {D}, {vr(AB + 4*(i % NBA), 4)}, {ar(8*ks+4*tb, 4)}, {'0' if ks == 0 else D}")
            m += 1
            if tb == 0:
                n = i + PFA
                if n < len(seq):
                    if n % 28 == 0:
                        while ('c', n // 28) not in a.tok or any(tok == ('c', n // 28) for u in U for _, tok in u): issue()
                        if DRY and n == 112: a.wait(vm=0)
                        a.wait_tok(('c', n // 28)); a("s_barrier")
                        if DRY and n == 112: a.raw(f"K4_DRY0:"); assert not U
                        if n == 56: F += f2.l
                        if n == 84: F += f3.l
                    rd(n)
            if U and m % LPM == 0: issue()
            for _ in range(TAILF if i >= 112 else FILL):
                if F: a(F.pop(0)[0])
    for t, tok in F + epi(6): a(t)
    if DRY: a("s_cbranch_execz K4_RET")
    a.stamp(6)
    a.dump(16, 4, 7)
    a.label("K4_END", flush=False)
    a("s_endpgm")
    return dict(name="k4_kernel", asm=a, grid=256, block=256, lds=143360 + 1024, vgprs=256 + 160, accum=256)
```

```python
from asmlib import *
MODF = 0
MODB = 16384
T12P = 0x8000
STAT = 0x60000
NBUF = 0x100000
HBUF = 0x400000
X1B  = 0x700000
Y2B  = 0xA00000
OBUF = 0x1000000
UBUF = 0x2000000
WOP  = 0x2800000
W2P  = 0x2E00000
W1P  = 0x3100000
MPAY = 0x3400000
HFL  = 0x3500000
FLG  = 0x3600000
XIL = list(range(248, 256)) + [29, 31]
TOUCH = int(os.environ.get('TOUCH', '1'))
WS_BYTES = 268435456
KA_X, KA_K, KA_V, KA_WQ, KA_WO, KA_BX, KA_W1, KA_B1, KA_W2, KA_B2, KA_C, KA_WMOD, KA_OUT, KA_DBG, KA_WS = [8 * i for i in range(15)]
SZ = {KA_X: 2048*640*2, KA_K: 32*2048*128*2, KA_V: 32*2048*128*2, KA_WQ: 640*4096*2, KA_WO: 4096*640*2, KA_W1: 640*1728*2,
      KA_B1: 1728*2, KA_W2: 1728*640*2, KA_B2: 640*2, KA_C: 640*2, KA_WMOD: 640*3840*2, KA_OUT: 2048*640*2, KA_WS: WS_BYTES, KA_DBG: 256}
LOG2E = 1.4426950408889634
import struct
def f32(x): return "0x%08x" % struct.unpack('<I', struct.pack('<f', x))[0]

def load_srds(a, items):
    for b, off in items: a(f"s_load_dwordx2 s[{b}:{b+1}], s[0:1], {off}")
    for b, off in items:
        a(f"s_mov_b32 s{b+2}, {SZ[off]}"); a(f"s_mov_b32 s{b+3}, 0x00020000")

def rnd2(a, x, y, t, mask):
    a(f"v_cvt_pk_bf16_f32 v{t}, v{x}, v{y}")
    a(f"v_lshlrev_b32 v{x}, 16, v{t}")
    a(f"v_and_b32 v{y}, s{mask}, v{t}")
def unpack2(a, x, y, t, mask):
    a(f"v_lshlrev_b32 v{x}, 16, v{t}")
    a(f"v_and_b32 v{y}, s{mask}, v{t}")
def rnd1(a, x):
    a(f"v_cvt_pk_bf16_f32 v{x}, v{x}, v{x}")
    a(f"v_lshlrev_b32 v{x}, 16, v{x}")
def xsum_swap(a, x, t, which):
    a(f"v_mov_b32 v{t}, v{x}")
    a(f"v_permlane{which}_swap_b32 v{x}, v{t}")
    a(f"v_add_f32 v{x}, v{x}, v{t}")
def fpoll(a, name, sHi, sh, sLo, off, mask, PSL=1):
    a(f"s_lshl_b32 s58, s{sHi}, {sh}"); a(f"s_add_u32 s58, s58, s{sLo}"); a("s_lshl_b32 s58, s58, 8"); a(f"s_add_u32 s58, s58, {FLG + off}")
    a("v_and_b32 v242, 31, v0"); a("v_lshlrev_b32 v242, 2, v242")
    a("s_mov_b32 s60, 200000")
    a.label(f"{name}_L", flush=False)
    a("buffer_load_dword v243, v242, s[16:19], s58 offen sc1")
    a("v_cmp_ne_u32 vcc, 0, v243")
    a.nop(1)
    a(f"s_and_b32 s59, vcc_lo, {mask}"); a(f"s_cmp_eq_u32 s59, {mask}"); a(f"s_cbranch_scc1 {name}_A")
    a("s_sub_u32 s60, s60, 1"); a(f"s_cbranch_scc1 {name}_A")
    a(f"s_sleep {PSL}"); a(f"s_branch {name}_L")
    if TOUCH: a.raw(f"{name}_T:"); a.raw("  s_branch K1_TRET")
    a.label(f"{name}_A", flush=False)
def fsig(a, v):
    a.wait(vm=0); a.barrier()
    a("v_mov_b32 v244, 1"); a(f"s_mov_b32 s59, {FLG}")
    a(f"buffer_store_dword v244, v{v}, s[16:19], s59 offen sc1")
```

```python
from common import *
import math
def gen_k1(PF=6, CAP=20, HW=16, PSL=2, NSL=64, H0=4, MSL=30, MSL0=20, NW0=4, KIS=1, XP=0, M1D=0, PAIR=1, OSC='sc1', RSC='sc1', WT=1, ZF=0, STMS=(40, 80, 160, 288)):
    a = Asm()
    STM = dict(zip(STMS, (5, 6, 7, 8, 12, 13)))
    NWG = 256
    TRL, TRH, KR = 1, 5, 9
    DWQ0, DWQ1, DV, DK0, DK1, L16 = 17, 18, 19, 20, 21, 22
    L0, L1, MFLOOR, VMAX, T0, T1, T2, T3 = 23, 24, 25, 26, 27, 28, 29, 30
    NM, SB, PB, HB, ACC, QF, AB = 32, 48, 96, 32, 128, 192, 224
    NB = 8
    sW, sHD, sRB, sM0, sH, sKV, sO, sMODE, sD, sHC, sSC, sO2 = 20, 21, 22, 23, 24, 25, 26, 27, 28, 29, 30, 31
    FLAG = 131072 + 16384
    SCR = FLAG + 256
    MK = 30
    NUNIT = 242
    slots = [('W', i) for i in range(10)] + [('K', 0)]
    for j in range(1, 8): slots += [('K', j), ('V', j-1)]
    slots += [('V', 7)]
    def bufof(x):
        kind, j = slots[x]
        return 1 + j % 3 if kind == 'W' else (4 + j % 4 if kind == 'K' else j % 4)
    def dma(x, w0=None):
        kind, j = slots[x]; buf = bufof(x)
        if kind == 'W':
            a(f"s_mov_b32 s{sD}, {j*524288}")
            v0_, v1_ = (w0, w0 + 1) if w0 else (DWQ0, DWQ1); r = QF + 8 * (j % 4)
            return [f"buffer_load_dwordx4 v[{r}:{r+3}], v{v0_}, s[4:7], s{sD} offen", f"buffer_load_dwordx4 v[{r+4}:{r+7}], v{v1_}, s[4:7], s{sD} offen"]
        a(f"s_add_u32 s{sD}, s{sKV}, {j*16384}")
        a(f"s_add_u32 m0, s{sM0}, {buf*16384}")
        v0_, v1_, srd = {'K': (DK0, DK1, 8), 'V': (DV, DV, 12)}[kind]
        return [f"buffer_load_dwordx4 v{v0_}, s[{srd}:{srd+3}], s{sD} offen lds", f"buffer_load_dwordx4 v{v1_}, s[{srd}:{srd+3}], s{sD} offen offset:1024 lds"]
    def reset():
        a.hist = []; a.pend = {}; a.vm_done = a.vm_n; a.lg_done = a.lg_n; a.smem_out = False
    def dwq(d0, d1, t):
        a(f"v_bfe_u32 v{t}, v0, 4, 2"); a(f"v_and_b32 v{t+1}, 15, v0"); a(f"v_lshlrev_b32 v{t+1}, 4, v{t+1}")
        a(f"v_lshl_add_u32 v{d0}, v{t}, 13, v{t+1}")
        a(f"s_lshl_b32 s32, s{sW}, 16"); a(f"s_lshl_b32 s33, s{sHD}, 8"); a("s_add_u32 s32, s32, s33")
        a(f"v_add_u32 v{d0}, s32, v{d0}"); a(f"v_add_u32 v{d1}, {4*8192}, v{d0}")
    def tagreq():
        a("s_memrealtime s[98:99]")
        a(f"s_cmp_eq_u32 s{sW}, 0"); a("s_cselect_b32 s96, 0, 0x1000")
        a("v_mov_b32 v249, s96"); a("v_mov_b32 v254, 0"); a("v_mov_b32 v255, 0")
        a("v_mov_b32 v252, s98"); a("v_mov_b32 v253, s99")
        a("s_mov_b64 exec, 1")
        a("buffer_atomic_cmpswap_x2 v[252:255], v249, s[52:55], 0 offen sc0 sc1")
        a("s_mov_b64 exec, -1")
    def gettag():
        a("v_readfirstlane_b32 s96, v252"); a("v_readfirstlane_b32 s97, v253")
        a("s_cmp_eq_u64 s[96:97], 0"); a("s_cselect_b64 s[96:97], s[98:99], s[96:97]")
    def poll(name, loads, chk):
        a("s_mov_b32 s60, 200000")
        a.label(f"{name}_L", flush=True)
        for t in loads: a(t)
        for i, r in enumerate(chk):
            a(f"v_cmp_ne_u64 vcc, s[96:97], v[{r}:{r+1}]")
        a("s_cmp_eq_u64 vcc, 0"); a(f"s_cbranch_scc1 {name}_A")
        a("s_sub_u32 s60, s60, 1"); a(f"s_cbranch_scc1 {name}_A")
        a(f"s_sleep {PSL}"); a(f"s_branch {name}_L")
        a.label(f"{name}_A", flush=False)
    EW = 250
    RD, TM, T2A, GS, RA, RA2, GA, TX = 96, 104, 112, 120, 124, 125, 126, 31
    RP5, RP6, RP4, RP7, RP7B = 124, 125, 127, 27, 28
    TAGL = FLAG + 64
    T2P = SCR + 5120; T2T = T2P + 4096
    a(f"s_cmp_ge_u32 s2, {NWG}"); a("s_cbranch_scc1 K2_END")
    a.stamp(0, True); a.stamp(1); a.stamp(4); a.stamp(5); a.stamp(6); a.stamp(7); a.stamp(13, True)
    load_srds(a, [(40, KA_C), (44, KA_WMOD), (48, KA_X), (16, KA_WS), (4, KA_WQ), (52, KA_DBG), (8, KA_K), (12, KA_V)])
    a(f"v_readfirstlane_b32 s{sW}, v0"); a(f"s_lshr_b32 s{sW}, s{sW}, 6")
    a(f"s_and_b32 s{sHD}, s2, 7"); a(f"s_lshl_b32 s{sHD}, s{sHD}, 2"); a("s_bfe_u32 s32, s2, 0x20003"); a(f"s_add_u32 s{sHD}, s{sHD}, s32")
    a(f"s_lshr_b32 s{sRB}, s2, 5")
    a(f"s_lshl_b32 s{sM0}, s{sW}, 11")
    a(f"s_mov_b32 s{MK}, 0xffff0000")
    a("s_cmp_ge_u32 s2, 184"); a("s_cbranch_scc1 K1_NONE")
    a("s_sub_u32 s24, s2, 40"); a("s_cmp_lt_u32 s24, 64"); a("s_cbranch_scc1 K1_LN")
    st0 = (a.hist[:], dict(a.pend), a.vm_n, a.vm_done, a.lg_n, a.lg_done)
    a("s_cmp_lt_u32 s2, 40"); a("s_cselect_b32 s24, 0, 64"); a("s_sub_u32 s24, s2, s24")
    if PAIR:
        a("s_and_b32 s25, s24, 7"); a("s_lshl_b32 s25, s25, 1"); a("s_bfe_u32 s26, s24, 0x10003"); a("s_or_b32 s25, s25, s26"); a("s_andn2_b32 s26, s24, 15"); a("s_or_b32 s25, s25, s26")
        a("s_sub_u32 s26, s24, 32"); a("s_cmp_lt_u32 s26, 16"); a("s_cselect_b32 s25, s24, s25"); a("s_cmp_ge_u32 s24, 112"); a("s_cselect_b32 s24, s24, s25")
    dwq(EW, EW+1, 60)
    a("s_cmp_lt_u32 s2, 40"); a("s_cbranch_scc1 K1_MGO")
    stm = (dict(a.pend), a.vm_n, a.vm_done)
    if MSL0 and M1D: a(f"s_sleep {MSL0}")
    for x in range(NW0 if M1D else 0):
        d = dma(x, EW); a(d[0]); a(d[1])
    if MSL: a(f"s_sleep {MSL}")
    a.label("K1_MGO", flush=False); a.pend, a.vm_n, a.vm_done = stm; a.smem_out = True
    a("v_lshrrev_b32 v1, 2, v0"); a("v_and_b32 v2, 3, v0")
    a("v_mul_u32_u24 v3, 10, v1"); a("v_mul_u32_u24 v4, 38400, v1"); a("v_lshl_add_u32 v4, v2, 4, v4")
    a("s_lshl_b32 s25, s24, 6")
    for i in range(1, 5): a(f"s_add_u32 s{25+i}, s25, {7680*i}")
    for i in range(5): a(f"buffer_load_dwordx4 v[{16+4*i}:{19+4*i}], v4, s[44:47], s{25+i} offen")
    for i in range(5): a(f"buffer_load_ushort v{10+i}, v3, s[40:43], 0 offen offset:{2*i}")
    tagreq()
    for i in range(5):
        x, e = 10+i, 40+i
        a(f"v_lshlrev_b32 v{x}, 16, v{x}")
        a(f"v_mul_f32 v{e}, {f32(-LOG2E)}, v{x}")
        a(f"v_exp_f32 v{e}, v{e}")
        a(f"v_add_f32 v{e}, 1.0, v{e}")
        a(f"v_rcp_f32 v{e}, v{e}")
        a(f"v_mul_f32 v{x}, v{x}, v{e}")
        rnd1(a, x)
    a.stamp(6)
    AC = 48
    for i in range(5):
        for j in range(4):
            unpack2(a, 56, 57, 16+4*i+j, MK)
            if i == 0:
                a(f"v_mul_f32 v{AC+2*j}, v56, v10"); a(f"v_mul_f32 v{AC+2*j+1}, v57, v10")
            else:
                a(f"v_fmac_f32 v{AC+2*j}, v56, v{10+i}"); a(f"v_fmac_f32 v{AC+2*j+1}, v57, v{10+i}")
    for sh in (8, 4):
        for j in range(8): a(f"v_add_f32_dpp v{AC+j}, v{AC+j}, v{AC+j} row_ror:{sh} row_mask:0xf bank_mask:0xf")
    a("v_lshrrev_b32 v5, 4, v0"); a("v_lshlrev_b32 v5, 7, v5"); a("v_lshl_add_u32 v5, v2, 5, v5"); a(f"v_add_u32 v5, {SCR}, v5")
    a(f"ds_write_b128 v5, v[{AC}:{AC+3}]"); a(f"ds_write_b128 v5, v[{AC+4}:{AC+7}] offset:16")
    a.barrier()
    a.stamp(4)
    a(f"s_cmp_lg_u32 s{sW}, 0"); a("s_cbranch_scc1 K1_MEND")
    a("v_and_b32 v6, 31, v0"); a("v_lshrrev_b32 v7, 5, v0"); a("v_lshlrev_b32 v7, 11, v7"); a("v_lshl_add_u32 v7, v6, 2, v7"); a(f"v_add_u32 v7, {SCR}, v7")
    for j in range(16): a(f"ds_read_b32 v{16+j}, v7 offset:{128*j}")
    for j in (8, 4, 2, 1):
        for i in range(j): a(f"v_add_f32 v{16+i}, v{16+i}, v{16+i+j}")
    xsum_swap(a, 16, 17, 32)
    rnd1(a, 16)
    a("s_mov_b32 s31, 0")
    a("s_sub_u32 s26, s24, 20"); a("s_cmp_lt_u32 s26, 20"); a("s_cselect_b32 s31, 1.0, s31")
    a("s_sub_u32 s26, s24, 80"); a("s_cmp_lt_u32 s26, 20"); a("s_cselect_b32 s31, 1.0, s31")
    a("v_add_f32 v16, s31, v16")
    a("v_cvt_pk_bf16_f32 v17, v16, v16"); a("v_lshlrev_b32 v16, 16, v17")
    a("v_lshlrev_b32 v8, 2, v6"); a("v_lshlrev_b32 v9, 1, v6")
    a("s_lshl_b32 s26, s24, 7"); a(f"s_add_u32 s27, s25, {MODB}")
    gettag()
    a("s_cmp_ge_u32 s24, 40"); a("s_cbranch_scc1 K1_MODB")
    a(f"v_add_u32 v20, {SCR+4096}, v9"); a("ds_write_b16 v20, v17")
    a("v_and_b32 v21, 7, v0"); a(f"v_lshlrev_b32 v22, 3, v21"); a(f"v_add_u32 v22, {SCR+4096}, v22")
    a("ds_read_b64 v[24:25], v22")
    a("v_lshrrev_b32 v23, 3, v0"); a("v_lshlrev_b32 v23, 13, v23"); a("v_lshl_add_u32 v23, v21, 4, v23")
    a("v_mov_b32 v26, s96"); a("v_mov_b32 v27, s97")
    a.stamp(5)
    a(f"s_add_u32 s28, s26, {MPAY}")
    for i in range(4):
        a("buffer_store_dwordx4 v[24:27], v23, s[16:19], s28 offen sc1")
        if i < 3: a("s_add_u32 s28, s28, 65536")
    a.label("K1_MODB", flush=False)
    a("buffer_store_dword v16, v8, s[16:19], s26 offen")
    a("buffer_store_short v17, v9, s[16:19], s27 offen")
    a.stamp(7); a.stamp(13, True)
    a.label("K1_MEND", flush=False)
    a("s_cmp_lt_u32 s2, 40"); a("s_cbranch_scc1 K1_BULK")
    a("s_branch K1_BULK2" if M1D else "s_branch K1_BULK")
    a.label("K1_LN", flush=False)
    a.hist, a.pend, a.vm_n, a.vm_done, a.lg_n, a.lg_done = st0; a.smem_out = True
    a("v_and_b32 v1, 3, v0"); a("v_lshrrev_b32 v2, 6, v0"); a("v_lshl_add_u32 v1, v2, 2, v1")
    a("v_bfe_u32 v2, v0, 2, 4")
    a("v_mul_u32_u24 v3, 1280, v1"); a("v_lshl_add_u32 v3, v2, 4, v3")
    a("s_mul_i32 s26, s24, 40960")
    for i in range(5): a(f"buffer_load_dwordx4 v[{8+4*i}:{11+4*i}], v3, s[48:51], s26 offen offset:{256*i}")
    tagreq()
    dwq(EW, EW+1, 60)
    a("v_lshlrev_b32 v4, 9, v2"); a("v_lshl_add_u32 v4, v1, 4, v4")
    a(f"s_add_u32 s34, s26, {HBUF}")
    for i in range(1, 5): a(f"s_add_u32 s{34+i}, s34, {8192*i}")
    a("s_lshr_b32 s39, s24, 3"); a("s_lshl_b32 s39, s39, 13"); a("s_and_b32 s29, s24, 7"); a("s_lshl_b32 s29, s29, 3"); a("s_add_u32 s39, s39, s29"); a(f"s_add_u32 s39, s39, {HFL}")
    X = 32
    for i in range(20): unpack2(a, X+2*i, X+2*i+1, 8+i, MK)
    a.stamp(6)
    a(f"v_add_f32 v5, v{X}, v{X+1}"); a(f"v_add_f32 v6, v{X+2}, v{X+3}")
    for i in range(4, 40, 2): a(f"v_add_f32 v5, v5, v{X+i}"); a(f"v_add_f32 v6, v6, v{X+i+1}")
    a("v_add_f32 v5, v5, v6")
    def allred(r):
        for sh in (8, 4): a(f"v_add_f32_dpp v{r}, v{r}, v{r} row_ror:{sh} row_mask:0xf bank_mask:0xf")
        xsum_swap(a, r, 7, 16); xsum_swap(a, r, 7, 32)
    allred(5)
    a(f"v_mul_f32 v5, {f32(1/640)}, v5")
    a("v_mov_b32 v6, 0"); a("v_mov_b32 v30, 0")
    for i in range(0, 40, 2):
        a(f"v_sub_f32 v28, v{X+i}, v5"); a(f"v_sub_f32 v29, v{X+i+1}, v5")
        a("v_fmac_f32 v6, v28, v28"); a("v_fmac_f32 v30, v29, v29")
    a("v_add_f32 v6, v6, v30")
    allred(6)
    a(f"v_mul_f32 v6, {f32(1/640)}, v6")
    rnd2(a, 5, 6, 7, MK)
    a(f"v_add_f32 v6, {f32(1e-5)}, v6"); rnd1(a, 6)
    a("v_sqrt_f32 v6, v6"); rnd1(a, 6)
    a("v_rcp_f32 v6, v6")
    for i in range(20):
        x, y = X+2*i, X+2*i+1
        a(f"v_sub_f32 v{x}, v{x}, v5"); a(f"v_sub_f32 v{y}, v{y}, v5")
        rnd2(a, x, y, 28, MK)
        a(f"v_mul_f32 v{x}, v{x}, v6"); a(f"v_mul_f32 v{y}, v{y}, v6")
        a(f"v_cvt_pk_bf16_f32 v{8+i}, v{x}, v{y}")
        if i % 4 == 3: a(f"buffer_store_dwordx4 v[{8+i-3}:{8+i}], v4, s[16:19], s{34+i//4} offen sc1")
    a.stamp(5)
    a.barrier(vm=0)
    a(f"s_cmp_lg_u32 s{sW}, 0"); a("s_cbranch_scc1 K1_BULK")
    gettag()
    a("v_lshlrev_b32 v1, 8, v0"); a("v_mov_b32 v2, s96"); a("v_mov_b32 v3, s97"); a("s_mov_b64 exec, 0xffffffff")
    a("buffer_store_dwordx2 v[2:3], v1, s[16:19], s39 offen sc1")
    a("s_mov_b64 exec, -1")
    a.stamp(7); a.stamp(13, True)
    a("s_branch K1_BULK")
    a.label("K1_NONE", flush=False)
    a.hist, a.pend, a.vm_n, a.vm_done, a.lg_n, a.lg_done = st0; a.smem_out = True
    tagreq()
    dwq(EW, EW+1, 60)
    if ZF and TOUCH:
        for w, t in enumerate(("KF_E_T", "KF_PB_T", "KF_PA_T")): a(f"s_cmp_eq_u32 s{sW}, {w + 1}"); a(f"s_cbranch_scc1 {t}")
        a.raw("K1_TRET:")
    if NSL: a(f"s_sleep {NSL}")
    a.wait(lg=0)
    a.stamp(6); a.stamp(7); a.stamp(13, True)
    for x in range(NW0):
        d = dma(x, EW); a(d[0]); a(d[1])
    gettag()
    a("s_branch K1_BULK2")
    a.label("K1_BULK", flush=False); reset()
    for x in range(NW0):
        d = dma(x, EW); a(d[0]); a(d[1])
    a.label("K1_BULK2", flush=False); a.hist = []
    RB0 = 6 * 16384

    a("s_cmp_ge_u32 s2, 182"); a("s_cbranch_scc1 K1_W1")
    a("s_cmp_ge_u32 s2, 128"); a("s_cbranch_scc1 K1_W2")
    load_srds(a, [(56, KA_WO)])
    a("s_mul_i32 s40, s2, 40960"); a("s_mul_i32 s42, s2, 5120"); a(f"s_mul_i32 s46, s{sW}, {128*5120}")
    a(f"s_add_u32 s42, s42, {WOP}")
    a("s_branch K1_P5")
    a.label("K1_W2", flush=False)
    load_srds(a, [(56, KA_W2)])
    a("s_sub_u32 s47, s2, 128")
    a("s_mul_i32 s40, s47, 40960"); a("s_mul_i32 s42, s47, 5120"); a(f"s_mul_i32 s46, s{sW}, {54*5120}")
    a(f"s_add_u32 s42, s42, {W2P}")
    a.label("K1_P5", flush=False)
    a("s_add_u32 s42, s42, s46"); a("s_mov_b32 s41, -64"); a(f"s_mul_i32 s43, s{sW}, 160"); a("s_mov_b32 s44, 0"); a("s_mov_b32 s45, 8")
    a("s_branch K1_DMA")
    a.label("K1_W1", flush=False)
    load_srds(a, [(56, KA_W1)])
    a("s_sub_u32 s47, s2, 182")
    a("s_mov_b32 s24, 0"); a("s_mov_b32 s45, 6")
    a("s_cmp_ge_u32 s47, 20"); a("s_cselect_b32 s24, 6, s24"); a("s_cselect_b32 s45, 5, s45"); a("s_cselect_b32 s25, 20, 0")
    a("s_cmp_ge_u32 s47, 40"); a("s_cselect_b32 s24, 11, s24"); a("s_cselect_b32 s25, 40, s25")
    a("s_sub_u32 s47, s47, s25")
    a(f"s_mul_i32 s40, s47, {32*3456}"); a("s_mul_i32 s25, s24, 224"); a("s_add_u32 s40, s40, s25")
    a(f"s_add_u32 s24, s24, s{sW}")
    a("s_mul_i32 s42, s24, 20"); a("s_add_u32 s42, s42, s47"); a("s_mul_i32 s42, s42, 7168"); a(f"s_add_u32 s42, s42, {W1P}")
    a(f"s_mov_b32 s41, {3456-1344}"); a(f"s_mul_i32 s43, s{sW}, 224"); a("s_mov_b32 s44, 1")
    a.label("K1_DMA", flush=False)
    a.smem_out = True
    a("s_add_u32 s47, s42, 4096"); a(f"s_add_u32 s43, s43, {RB0}")
    a(f"s_lshl_b32 s46, s{sW}, 10"); a(f"s_add_u32 s46, s46, {RB0}")
    a.hist = []
    a.stamp(8)
    a(f"s_lshl_b32 s32, s{sRB}, 3"); a(f"s_add_u32 s32, s32, s{sW}")
    a(f"s_mul_i32 s{sH}, s32, 40960"); a(f"s_add_u32 s{sH}, s{sH}, {HBUF}")
    a(f"s_lshl_b32 s{sKV}, s{sHD}, 19"); a(f"s_add_u32 s{sKV}, s{sKV}, {1536*256}")
    a(f"s_lshl_b32 s{sO}, s32, 18"); a(f"s_lshl_b32 s33, s{sHD}, 13"); a(f"s_add_u32 s{sO}, s{sO}, s33"); a(f"s_add_u32 s{sO}, s{sO}, {OBUF}")
    a(f"s_add_u32 s{sO2}, s{sO}, 4096")
    a(f"s_mov_b32 s{sMODE}, 0"); a(f"s_mov_b32 s{sSC}, {f32(LOG2E / math.sqrt(128.0))}")
    a("s_mov_b64 s[34:35], 0")
    a.nop(2)
    a(f"v_mov_b32 v{DWQ0}, v{EW}"); a(f"v_mov_b32 v{DWQ1}, v{EW+1}")
    la, g, q2, c4, t5, t6 = AB, AB+1, AB+2, AB+3, AB+4, AB+5
    a(f"v_and_b32 v{la}, 63, v0"); a(f"v_lshrrev_b32 v{g}, 4, v{la}"); a(f"v_bfe_u32 v{q2}, v0, 2, 2"); a(f"v_and_b32 v{c4}, 3, v0")
    a(f"v_lshlrev_b32 v{L16}, 4, v{la}")
    a(f"v_xor_b32 v{t5}, v{q2}, v{g}"); a(f"v_lshlrev_b32 v{t5}, 6, v{t5}"); a(f"v_lshl_add_u32 v{t5}, v{c4}, 4, v{t5}")
    a(f"v_lshl_add_u32 v{DV}, v{g}, 8, v{t5}"); a(f"v_add_u32 v{DV}, s{sM0}, v{DV}")
    a(f"s_and_b32 s32, s{sW}, 1"); a("s_lshl_b32 s32, s32, 3")
    a(f"v_add_u32 v{t5}, s32, v{g}"); a(f"v_and_b32 v{t6}, 15, v0"); a(f"v_xor_b32 v{t5}, v{t5}, v{t6}")
    a(f"v_lshlrev_b32 v{DK0}, 8, v{g}"); a(f"v_add_u32 v{DK0}, s{sM0}, v{DK0}")
    a(f"v_xor_b32 v{t6}, 4, v{t5}")
    a(f"v_lshl_add_u32 v{DK1}, v{t6}, 4, v{DK0}"); a(f"v_lshl_add_u32 v{DK0}, v{t5}, 4, v{DK0}")
    a(f"v_lshrrev_b32 v{t5}, 1, v{g}"); a(f"v_lshl_add_u32 v{t5}, v{t5}, 3, v{q2}"); a(f"v_lshlrev_b32 v{t5}, 8, v{t5}")
    a(f"v_and_b32 v{t6}, 1, v{g}"); a(f"v_lshl_add_u32 v{t5}, v{t6}, 5, v{t5}")
    a(f"v_and_b32 v{t6}, 1, v{c4}"); a(f"v_lshl_add_u32 v{t5}, v{t6}, 4, v{t5}")
    a(f"v_lshrrev_b32 v{t6}, 1, v{c4}"); a(f"v_lshl_add_u32 v{t5}, v{t6}, 3, v{t5}")
    for b in range(4):
        a(f"v_xor_b32 v{t6}, {b}, v{q2}"); a(f"v_lshl_add_u32 v{TRL+b}, v{t6}, 6, v{t5}"); a(f"v_add_u32 v{TRH+b}, 0x10000, v{TRL+b}")
    a(f"v_and_b32 v{t5}, 19, v0"); a(f"v_bfe_u32 v{t6}, v0, 2, 1"); a(f"v_lshl_add_u32 v{t5}, v{t6}, 3, v{t5}")
    a(f"v_bfe_u32 v{t6}, v0, 3, 1"); a(f"v_lshl_add_u32 v{t5}, v{t6}, 2, v{t5}")
    a(f"v_and_b32 v{t6}, 15, v{t5}"); a(f"v_lshrrev_b32 v{g}, 5, v{la}"); a(f"v_xor_b32 v{t6}, v{t6}, v{g}")
    a(f"v_lshlrev_b32 v{t6}, 4, v{t6}"); a(f"v_lshl_add_u32 v{t5}, v{t5}, 8, v{t6}")
    a(f"v_add_u32 v{t5}, 0x10000, v{t5}")
    for t in range(8): a(f"v_xor_b32 v{KR+t}, {32*t}, v{t5}")
    def addr_rmw():
        pass
        a(f"v_bfe_u32 v{g}, v0, 4, 2"); a(f"s_lshl_b32 s32, s{sW}, 5"); a(f"s_add_u32 s32, s32, {SCR}"); a(f"v_lshl_add_u32 v{GA}, v{g}, 2, s32")
    addr_rmw()
    def hload(f):
        if f % 4 == 0 or f == H0: a(f"s_add_u32 s{sHC}, s{sH}, {1024*(f - f % 4) if not (XP == 2 and f >= 16) else 0}")
        r = HB + 4 * (f % HW)
        a(f"buffer_load_dwordx4 v[{r}:{r+3}], v{L16}, s[16:19], s{sHC} offen offset:{1024*(f % 4)}")
    if WT:
        a(f"v_min_u32 v{RD}, 11, v{la}"); a(f"s_mul_i32 s32, s{sW}, 12"); a(f"v_add_u32 v{RD}, s32, v{RD}")
        a(f"v_lshrrev_b32 v{RD+1}, 1, v{RD}"); a(f"v_and_b32 v{RD}, 1, v{RD}"); a(f"v_lshlrev_b32 v{RD+1}, 13, v{RD+1}"); a(f"v_lshl_add_u32 v{RD}, v{RD}, 7, v{RD+1}")
        a(f"s_mul_i32 s32, s{sRB}, {48*8192}"); a(f"s_lshl_b32 s33, s{sHD}, 8"); a("s_add_u32 s32, s32, s33"); a(f"s_add_u32 s32, s32, {256*8192}")
        a(f"buffer_load_dword v{T3}, v{RD}, s[4:7], s32 offen")
    a(f"v_mov_b32 v{t5}, {TAGL}"); a(f"v_mov_b32 v{AB+6}, s96"); a(f"v_mov_b32 v{AB+7}, s97")
    a(f"s_cmp_lg_u32 s{sW}, 0"); a("s_cbranch_scc1 K1_T1")
    a(f"ds_write_b64 v{t5}, v[{AB+6}:{AB+7}]")
    a.label("K1_T1", flush=False)
    a.barrier()
    a(f"ds_read_b64 v[{AB+6}:{AB+7}], v{t5}")
    a(f"s_lshl_b32 s32, s2, 8"); a(f"s_lshl_b32 s33, s{sW}, 3"); a("s_add_u32 s32, s32, s33"); a(f"s_add_u32 s32, s32, {HFL}")
    a(f"v_mov_b32 v{t6}, 0")
    a(f"v_min_u32 v{RD}, 39, v{la}"); a(f"v_lshlrev_b32 v{RD}, 4, v{RD}"); a(f"s_mul_i32 s33, s{sW}, 640"); a(f"v_add_u32 v{RD}, s33, v{RD}")
    a(f"v_add_u32 v{RD+1}, {SCR}, v{RD}")
    a("s_and_b32 s33, s2, 31"); a("s_lshl_b32 s33, s33, 13"); a(f"s_add_u32 s33, s33, {MPAY}")
    a("s_mov_b32 s37, 0xffff0000")
    a(f"v_readfirstlane_b32 s96, v{AB+6}"); a(f"v_readfirstlane_b32 s97, v{AB+7}")
    reset(); a.nop(5)
    poll("K1_PH", [f"buffer_load_dwordx2 v[{AB+6}:{AB+7}], v{t6}, s[16:19], s32 offen sc1"], [AB+6])
    a.stamp(12)
    for f in range(H0): hload(f)
    PL = 160
    a.vm_done = a.vm_n; a.pend = {}
    poll("K1_PM", [f"buffer_load_dwordx4 v[{PL}:{PL+3}], v{RD}, s[16:19], s33 offen sc1"], [PL+2])
    for f in range(H0, HW): hload(f)
    unpack2(a, PL+4, PL+5, PL, 37); unpack2(a, PL+6, PL+7, PL+1, 37)
    a(f"ds_write_b128 v{RD+1}, v[{PL+4}:{PL+7}]")
    a.barrier()
    a.stamp(4)
    a("s_branch K2_START2")
    a.label("K2_START", flush=False); reset()
    addr_rmw()
    a("s_mov_b32 s45, 0")
    for x in range(NW0):
        d = dma(x); a(d[0]); a(d[1], tok=('s', x))
    a.barrier()
    for f in range(HW): hload(f)
    a.label("K2_START2", flush=False); a.hist = []
    a("s_mov_b32 s37, 0xffff0000")
    a(f"v_mov_b32 v{L0}, 0"); a(f"v_mov_b32 v{L1}, 0")
    a(f"s_cmp_lg_u32 s{sMODE}, 0"); a("s_cbranch_scc1 K2_NOINIT")
    a(f"v_mov_b32 v{MFLOOR}, 0xff800000")
    a.label("K2_NOINIT", flush=False)
    a(f"v_mov_b32 v{VMAX}, 0xff800000")
    mf = []
    def trreads(x, t, b):
        buf = bufof(x); base = (TRL if buf < 4 else TRH) + b; off = (buf % 4) * 16384 + t * 4096
        return lambda A: [f"ds_read_b64_tr_b16 v[{A}:{A+1}], v{base} offset:{off}", f"ds_read_b64_tr_b16 v[{A+2}:{A+3}], v{base} offset:{off+1024}"]
    def kreads(x, blk, t):
        off = bufof(x) * 16384 + blk * 8192 - 65536
        return lambda A: [f"ds_read_b128 v[{A}:{A+3}], v{KR+t} offset:{off}"]
    sblk = lambda n: SB + 16 * (n % 3)
    last = {}
    first_use = {}
    for x, (kind, j) in enumerate(slots):
        if kind == 'W':
            order = [(t, b) for t in range(4) for b in range(4)] if j < 9 else [(t, b) for b in range(4) for t in range(4)]
            for t, b in order:
                D = ACC + 16*b; f = 4*j + t
                mf.append(dict(D=D, B=HB + 4*(f % HW), C=('0' if f == 0 else vr(D, 16)), rd=trreads(x, t, b)))
                last[('Q', b)] = len(mf) - 1; last[('h', f)] = len(mf) - 1
        elif kind == 'K':
            for blk in range(2):
                n = 2*j + blk; D = sblk(n)
                for t in range(8):
                    C = vr(D, 16) if t else ('0' if n < 2 else vr(NM, 16))
                    mf.append(dict(D=D, B=QF + 4*t, C=C, rd=kreads(x, blk, t)))
                    first_use.setdefault(('Qf', t), len(mf) - 1); first_use.setdefault(('Sw', n), len(mf) - 1)
                    if n >= 2 and t == 0: first_use.setdefault('NM', len(mf) - 1)
                last[('S', n)] = len(mf) - 1
        else:
            order = [(t, b) for t in range(4) for b in range(4)]
            if j == 7: order = order[:8] + [(t, b) for b in range(4) for t in (2, 3)]
            for t, b in order:
                D = ACC + 16*b
                mf.append(dict(D=D, B=PB + 16*(j % 2) + 4*t, C=('0' if (j == 0 and t == 0) else vr(D, 16)), rd=trreads(x, t, b)))
                first_use.setdefault(('P', j, t), len(mf) - 1); last[('O', b)] = len(mf) - 1
    N = len(mf); assert N == 416
    Q = []; INF = 10**9; side = []
    def q(text, rel, dl=INF, cost=4): Q.append((text, rel, dl, cost))
    def rmw(x):
        off = bufof(x) * 16384; R = QF + 8 * (x % 4)
        L = [f"ds_read_b32 v{GS+i}, v{GA} offset:{256*x + (2560, 2576, 0, 16)[i]}" for i in range(4)]
        L.append(('gap',))
        for i in range(8):
            h = i // 4; t = TM + 2*(i % 4); ac = T2A + 2*(i % 4); sel = f"op_sel:[0,{h}] op_sel_hi:[1,{h}]"; sel3 = f"op_sel:[0,{h},0] op_sel_hi:[1,{h},1]"
            L.append(f"v_lshlrev_b32 v{t}, 16, v{R+i}"); L.append(f"v_and_b32 v{t+1}, s37, v{R+i}")
            if x == 0 and h == 0: L.append(f"v_pk_mul_f32 v[{ac}:{ac+1}], v[{t}:{t+1}], v[{GS+2}:{GS+3}] {sel}")
            else: L.append(f"v_pk_fma_f32 v[{ac}:{ac+1}], v[{t}:{t+1}], v[{GS+2}:{GS+3}], v[{ac}:{ac+1}] {sel3}")
            L.append(f"v_pk_mul_f32 v[{t}:{t+1}], v[{t}:{t+1}], v[{GS}:{GS+1}] {sel}")
            L.append(f"v_cvt_pk_bf16_f32 v{RD+i}, v{t}, v{t+1}")
            if i % 4 == 3:
                L.append(f"ds_write_b128 v{DV}, v[{RD+4*h}:{RD+4*h+3}] offset:{off+1024*h}")
                if x + 4 < 10: L.append(('wld', x + 4, h))
        if XP == 1 and x > 0: L = [t.replace(f"v[{RD}:{RD+3}]", f"v[{R}:{R+3}]").replace(f"v[{RD+4}:{RD+7}]", f"v[{R+4}:{R+7}]") if isinstance(t, str) else t for t in L if not (isinstance(t, str) and t.startswith('v_'))]
        L.append(('lgtok',))
        return L
    QFD = 64
    RPB = 16*5 + 16 - PF
    def rpk():
        u1, u2, u3 = RP7, RP7B, RP7B + 1
        A = [f"v_bfe_u32 v{u1}, v0, 4, 2", f"v_bfe_u32 v{u2}, v0, 2, 2", f"v_lshl_add_u32 v{u1}, v{u1}, 3, v{u2}", f"v_mul_u32_u24 v{u1}, 1344, v{u1}", f"v_add_u32 v{u1}, s43, v{u1}",
             f"v_and_b32 v{u3}, 3, v0", f"v_lshl_add_u32 v{RP5}, v{u3}, 4, v{u1}", f"v_lshl_add_u32 v{RP6}, v{u3}, 3, v{u1}",
             "s_cmp_eq_u32 s44, 1", "s_cselect_b64 vcc, -1, 0", "s_cselect_b32 s32, 0, 0x40000000", f"v_cndmask_b32 v{RP4}, v{RP6}, v{RP5}, vcc",
             f"s_cmp_lt_u32 s{sW}, s45", "s_cselect_b32 s33, 0, 0x40000000", f"s_cmp_lt_u32 s2, {NUNIT}", "s_cselect_b32 s33, s33, 0x40000000",
             f"v_or_b32 v{RP7}, s33, v{L16}", f"v_or_b32 v{RP7B}, s32, v{RP7}"]
        L = []
        for b in range(7):
            va, off = [(RP5, 0), (RP5, 8), (RP5, 64), (RP5, 72), (RP4, 128), (RP5, 136), (RP6, 192)][b]
            L.append(f"ds_read_b64_tr_b16 v[{QFD+4*b}:{QFD+4*b+1}], v{va} offset:{off}")
            L.append(f"ds_read_b64_tr_b16 v[{QFD+4*b+2}:{QFD+4*b+3}], v{va} offset:{off+5376}")
        L.append(('lgtok',)); L.append(('gap',))
        for b in range(7): L.append(f"buffer_store_dwordx4 v[{QFD+4*b}:{QFD+4*b+3}], v{RP7 if b < 5 else RP7B}, s[16:19], s{42 if b < 4 else 47} offen offset:{1024*(b & 3)} {RSC}")
        return A, L
    def rawaddr(i0, sh=0):
        x1, x2 = T2, TX
        return ([f"v_add_u32 v{x1}, {i0}, v0"] if not sh else [f"v_lshlrev_b32 v{x1}, {sh}, v0"]) + [f"v_min_u32 v{x1}, 2687, v{x1}",
                f"v_mul_u32_u24 v{x2}, 3121, v{x1}", f"v_lshrrev_b32 v{x2}, 18, v{x2}", f"v_lshlrev_b32 v{x1}, 4, v{x1}",
                f"v_mad_i32_i24 v{T3}, v{x2}, s41, v{x1}", f"v_add_u32 v{T3}, s40, v{T3}"]
    RMW0 = rmw(0)
    RA_, RL_ = rpk()
    RQ = [(t, RPB - 14, INF, 2) for t in RA_]
    rds = [t for t in RL_ if isinstance(t, str) and t.startswith('ds_')]; sts = [t for t in RL_ if isinstance(t, str) and t.startswith('buffer_')]
    for b in range(7):
        r = last[('h', 24 + b)] + 3
        RQ += [(rds[2*b], r, INF, 4), (rds[2*b+1], r, INF, 4), (sts[b], r + 3, INF, 8)]
    RQ.sort(key=lambda t: t[1])
    for x in range(1, 10):
        r = max(0, 16*(x-1) - PF + 1); dl = 16*x - PF
        L = rmw(x)
        if x == 9:
            L = L[:-1]
            for e in range(4): L += [f"v_permlane32_swap_b32 v{T2A+e}, v{T2A+e+4}"]
            L += [f"v_and_b32 v{TM}, 15, v0", f"v_lshlrev_b32 v{TM}, 5, v{TM}", f"v_bfe_u32 v{TM+1}, v0, 4, 2", f"v_lshl_add_u32 v{TM}, v{TM+1}, 3, v{TM}"]
            for e in range(4): L += [f"v_add_f32 v{T2A+e}, v{T2A+e}, v{T2A+e+4}"]
            L += [f"v_add_u32 v{TM}, {T2P}, v{TM}", f"s_lshr_b32 s32, s{sM0}, 2", f"v_add_u32 v{TM+1}, s32, v{TM}"]
            for e in range(2): L += [f"v_permlane16_swap_b32 v{T2A+e}, v{T2A+e+2}"]
            L += [f"v_bfe_u32 v{TX}, v0, 5, 1", f"v_lshlrev_b32 v{TX}, 5, v{TX}"]
            for e in range(2): L += [f"v_add_f32 v{T2A+e}, v{T2A+e}, v{T2A+e+2}"]
            L += [f"ds_write_b64 v{TM+1}, v[{T2A}:{T2A+1}]", ('lgtok',), f"s_add_u32 s32, s32, {T2T}", f"v_add_u32 v{TX}, s32, v{TX}"]
        k = 0
        for t in L:
            if t == ('gap',): r += 2
            else:
                while RQ and RQ[0][1] <= r + k // 5: q(*RQ.pop(0))
                q(t, r, dl); k += 1
    assert not RQ
    r = 16*9 - PF + 1
    for w in range(8): q(f"ds_read_b64 v[{T2A+2*w if w < 6 else RD+2*w-12}:{(T2A+2*w if w < 6 else RD+2*w-12)+1}], v{TM} offset:{512*w}", r + w // 4)
    r += 4
    for d, e in ((T2A, T2A+2), (T2A+4, T2A+6), (T2A+8, T2A+10), (RD, RD+2), (T2A, T2A+4), (RD, T2A+8), (T2A, RD)):
        q(f"v_pk_add_f32 v[{d}:{d+1}], v[{d}:{d+1}], v[{e}:{e+1}]", r)
    q(f"v_mul_f32 v{T2A}, s{sSC}, v{T2A}", r); q(f"v_mul_f32 v{T2A+1}, s{sSC}, v{T2A+1}", r)
    q(f"ds_write_b64 v{TM+1}, v[{T2A}:{T2A+1}] offset:4096", r)
    t2r = lambda t: (96, 104, 112, 120, 64, 72, 80, 88)[t]
    for t in range(8):
        for h in range(2): q(f"ds_read_b128 v[{t2r(t)+4*h}:{t2r(t)+4*h+3}], v{TX} offset:{64*t+16*h}", 16*9 - PF + 8 + t // 2, first_use[('Qf', 0)])
    for b in range(4):
        r = last[('Q', b)] + 1
        for i1 in range(2):
            t = 2*b + i1; s = ACC + 16*b + 8*i1; dl = first_use[('Qf', t)]
            for e in range(8): q(f"v_fma_f32 v{s+e}, v{s+e}, s{sSC}, v{t2r(t)+e}", r, dl)
            for e in range(4): q(f"v_cvt_pk_bf16_f32 v{QF+4*t+e}, v{s+2*e}, v{s+2*e+1}", r, dl)
    for n in range(16):
        S = sblk(n); r = last[('S', n)] + 1; j = n // 2; P = PB + 16*(j % 2) + 8*(n % 2)
        dlw = first_use.get(('Sw', n+3), INF)
        if n == 0:
            dl = first_use['NM']
            q(f"v_max3_f32 v{T0}, v{S}, v{S+1}, v{S+2}", r, dl); q(f"v_max3_f32 v{T1}, v{S+3}, v{S+4}, v{S+5}", r, dl)
            for e in range(6, 14, 4):
                q(f"v_max3_f32 v{T0}, v{T0}, v{S+e}, v{S+e+1}", r, dl); q(f"v_max3_f32 v{T1}, v{T1}, v{S+e+2}, v{S+e+3}", r, dl)
            q(f"v_max3_f32 v{T0}, v{T0}, v{S+14}, v{S+15}", r, dl)
            q(f"v_max3_f32 v{T0}, v{T0}, v{T1}, v{MFLOOR}", r, dl)
            q(f"v_mov_b32 v{T1}, v{T0}", r, dl)
            q(f"v_permlane32_swap_b32 v{T0}, v{T1}", r, dl)
            q(f"v_max_f32 v{T0}, v{T0}, v{T1}", r, dl)
            q(f"v_cndmask_b32_e64 v{T0}, v{T0}, 0, s[34:35]", r, dl)
            for e in range(16): q(f"v_sub_f32 v{NM+e}, 0, v{T0}", r, dl)
        q(('side', n), r, min(first_use[('P', j, 2*(n % 2))], dlw), 4)
        ops = []
        for i in range(8):
            dl = min(first_use[('P', j, 2*(n % 2) + i // 4)], dlw)
            if n < 2:
                q(f"v_sub_f32 v{S+2*i}, v{S+2*i}, v{T0}", r, dl); q(f"v_sub_f32 v{S+2*i+1}, v{S+2*i+1}, v{T0}", r, dl)
            q(f"v_exp_f32 v{S+2*i}, v{S+2*i}", r, dl, 8); q(f"v_exp_f32 v{S+2*i+1}, v{S+2*i+1}", r, dl, 8)
            if i > 0 and i != 4:
                k = i - 1
                q(f"v_cvt_pk_bf16_f32 v{P+k}, v{S+2*k}, v{S+2*k+1}", r, dl)
                q(f"v_add_f32 v{L0}, v{L0}, v{S+2*k}", r, dl); q(f"v_add_f32 v{L1}, v{L1}, v{S+2*k+1}", r, dl)
            if i in (3, 7):
                q(f"v_add_f32 v{L0}, v{L0}, v{S+2*i}", r, dl)
                q(f"v_cvt_pk_bf16_f32 v{P+i}, v{S+2*i}, v{S+2*i+1}", r, dl)
                q(f"v_add_f32 v{L1}, v{L1}, v{S+2*i+1}", r, dl)
    r = last[('S', 15)] + 1
    ZA, CK = SB, SB + 4
    q(f"v_add_f32 v{L0}, v{L0}, v{L1}", r); q(f"v_mov_b32 v{L1}, v{L0}", r)
    for e in range(4): q(f"v_mov_b32 v{ZA+e}, 0", r)
    q(f"v_permlane32_swap_b32 v{L0}, v{L1}", r); q(f"v_add_f32 v{L0}, v{L0}, v{L1}", r)
    q(f"v_rcp_f32 v{L1}, v{L0}", r, INF, 8)
    q(f"v_cmp_nlt_f32_e64 s[32:33], v{L0}, s36", r)
    for b in range(4):
        r = last[('O', b)] + 1
        for i1 in range(2):
            s = ACC + 16*b + 8*i1; d = QF + 8*b + 4*i1
            for e in range(8): q(f"v_mul_f32 v{s+e}, v{L1}, v{s+e}", r)
            for e in range(4): q(f"v_cvt_pk_bf16_f32 v{d+e}, v{s+2*e}, v{s+2*e+1}", r)
            k = 2*b + i1
            q(f"buffer_store_dwordx4 v[{d}:{d+3}], v{L16}, s[16:19], s{sO if k < 4 else sO2} offen offset:{1024*(k % 4)} {OSC}", r, INF, 8)
            q(f"v_mfma_f32_16x16x32_bf16 v[{CK}:{CK+3}], v[{ZA}:{ZA+3}], v[{d}:{d+3}], {'0' if k == 0 else vr(CK, 4)}", r, INF, 8)
    a(f"s_mov_b32 s36, {f32(2.0**100)}")
    qi = 0
    def wld(t):
        r = QF + 8 * (t[1] % 4) + 4 * t[2]
        a(f"s_mov_b32 s{sD}, {t[1]*524288}"); a(f"buffer_load_dwordx4 v[{r}:{r+3}], v{DWQ0 + t[2]}, s[4:7], s{sD} offen")
    def emit_q():
        nonlocal qi
        text = Q[qi][0]; qi += 1
        if isinstance(text, tuple) and text[0] == 'tok': a.wait_tok(text[1])
        elif isinstance(text, tuple) and text[0] == 'lgtok': a.lgtok = a.lg_n
        elif isinstance(text, tuple) and text[0] == 'wld': wld(text)
        elif isinstance(text, tuple):
            n = text[1]
            a(f"s_cmp_eq_u32 s{sMODE}, 1"); a(f"s_cbranch_scc1 K2_SIDE{n}"); a.label(f"K2_BACK{n}", flush=False)
            side.append(n)
        elif text.startswith("s_nop"): a.nop(int(text.split()[1]) + 1)
        else: a(text)
    issue_at = {}
    occ = {b: -1 for b in range(8)}; occ[6] = occ[7] = 7
    a.rawm = {}
    for x in range(len(slots)):
        b = bufof(x)
        if x >= 10: issue_at.setdefault(max(occ[b] + 1, x - 7, KIS), []).append(x)
        occ[b] = x
    for jj in range(6): issue_at.setdefault(jj // 2, []).insert(jj % 2, ('raw', jj))
    for t in RMW0:
        if isinstance(t, str): a(t)
        elif t[0] == 'wld': wld(t)
    a.barrier()
    a.lgtok = 0
    a.stamp(2)
    a.stamp(3); a.stamp(10, True)
    def reads(m):
        A = AB + 4 * (m % NB)
        for t in mf[m]['rd'](A): a(t)
    for m in range(PF): reads(m)
    pend_dma = []
    hnext = HW
    log = []
    for m in range(N):
        a.curm = m
        lastdl = max([i for i in range(qi, len(Q)) if Q[i][2] <= m], default=-1)
        forced = 0
        while qi <= lastdl:
            assert Q[qi][1] <= m, (m, Q[qi])
            emit_q(); forced += 1
        I = mf[m]; A = AB + 4 * (m % NB)
        a(f"v_mfma_f32_32x32x16_bf16 {vr(I['D'],16)}, {vr(A,4)}, {vr(I['B'],4)}, {I['C']}")
        s, p = divmod(m, 16)
        if m in STM: a.stamp(STM[m], True)
        if p == 16 - PF and s + 1 < len(slots):
            if s + 1 >= 10: a.wait_tok(('s', s + 1))
            if m == RPB: a.wait_tok(('rp', 5))
            a.wait(lg=a.lg_n - a.lgtok); a("s_barrier")
            for x in issue_at.get(s, []): pend_dma.append(x)
        if m + PF < N: reads(m + PF)
        budget = CAP
        if pend_dma and p in ((17 - PF) % 16, (19 - PF) % 16, (21 - PF) % 16, (23 - PF) % 16):
            x = pend_dma[0]
            if isinstance(x, int):
                d = dma(x); a(d[0]); pend_dma[0] = (x, d[1])
            elif x[0] in ('touch', 'raw'):
                for t in (rawaddr(0, 3) if x[0] == 'touch' else rawaddr(512*x[1])): a(t)
                pend_dma[0] = (x[0] + '2', x[1]); budget -= 20
            elif x[0] == 'touch2':
                a(f"buffer_load_dword v{T1}, v{T3}, s[56:59], 0 offen"); a.pend.pop(("v", T1), None); pend_dma.pop(0)
            elif x[0] == 'raw2':
                a(f"s_add_u32 m0, s46, {8192*x[1]}")
                a(f"buffer_load_dwordx4 v{T3}, s[56:59], 0 offen lds", tok=('rp', x[1])); a.rawm[x[1]] = m; pend_dma.pop(0)
            else:
                d = dma(x[0]); a(d[1], tok=('s', x[0])); pend_dma.pop(0)
            budget -= 8
        if hnext < 40 and hnext - HW <= (m - 3) // 4 and (m % 2 == 1):
            hload(hnext); hnext += 1; budget -= 4
        ne = 0
        while qi < len(Q) and Q[qi][1] <= m and budget > 0:
            t = Q[qi][0]
            if isinstance(t, str) and not t.startswith("s_nop") and a.probe(t)[0] > 0: break
            budget -= Q[qi][3]; emit_q(); ne += 1
        log.append((m, forced, ne))
    while qi < len(Q): emit_q()
    a.k2log = log; print("raw dma at", a.rawm, "dma issue", issue_at)
    a.stamp(9); a.stamp(11, True)
    a(f"v_cmp_u_f32_e64 s[38:39], v{CK}, v{CK}")
    a("s_or_b64 s[32:33], s[32:33], s[38:39]")
    a("s_cmp_lg_u64 s[32:33], 0"); a("s_cselect_b32 s32, 1, 0")
    a(f"s_lshl_b32 s33, s{sW}, 2"); a(f"s_add_u32 s33, s33, {FLAG}")
    a(f"v_mov_b32 v{T2}, s32"); a(f"v_mov_b32 v{T3}, s33")
    a(f"ds_write_b32 v{T3}, v{T2}")
    a.barrier()
    a(f"s_cmp_eq_u32 s{sMODE}, 2"); a("s_cbranch_scc1 K2_FIN")
    a(f"s_cmp_eq_u32 s{sMODE}, 1"); a("s_cbranch_scc1 K2_TO2")
    a(f"v_bfe_u32 v{T3}, v{L16}, 2, 5"); a(f"v_add_u32 v{T3}, {FLAG}, v{T3}")
    a(f"ds_read_b32 v{T2}, v{T3}")
    a(f"v_cmp_ne_u32_e64 s[32:33], 0, v{T2}")
    a("s_cmp_eq_u64 s[32:33], 0"); a("s_cbranch_scc1 K2_FIN")
    a(f"s_mov_b32 s{sMODE}, 1"); a("s_mov_b64 s[34:35], -1")
    a.wait(vm=0); a.flush()
    a("s_branch K2_START")
    a.label("K2_TO2", flush=False)
    a(f"v_mov_b32 v{T1}, v{VMAX}"); a.nop(2)
    a(f"v_permlane32_swap_b32 v{VMAX}, v{T1}"); a(f"v_max_f32 v{MFLOOR}, v{VMAX}, v{T1}")
    a(f"s_mov_b32 s{sMODE}, 2"); a("s_mov_b64 s[34:35], 0")
    a.raw("  s_waitcnt vmcnt(0) lgkmcnt(0)"); a.nop(8)
    a("s_branch K2_START")
    for n in side:
        S = sblk(n)
        a.label(f"K2_SIDE{n}", flush=False); a.hist = []
        a.nop(16)
        for e in range(0, 16, 2): a(f"v_max3_f32 v{VMAX}, v{VMAX}, v{S+e}, v{S+e+1}")
        a.nop(8)
        a(f"s_branch K2_BACK{n}")
    a.label("K2_FIN", flush=False)
    if ZF:
        a("v_lshlrev_b32 v2, 2, v0"); a("v_cmp_lt_u32 vcc, 63, v0"); a("v_bfrev_b32 v1, 2"); a("v_cndmask_b32 v2, v2, v1, vcc"); a("v_mov_b32 v1, 0")
        a("s_lshl_b32 s60, s2, 8"); a(f"s_add_u32 s60, s60, {FLG}")
        a("buffer_store_dword v1, v2, s[16:19], s60 offen sc1")
    a.dump(16, 2, 14)
    a.label("K2_END", flush=False)
    a("s_endpgm")
    return dict(name="k1_kernel", asm=a, grid=NWG, block=512, lds=T2T + 4096, vgprs=256)
```

```python
from common import *
def gen_k35(which, PD=6, SC=None, IL=1, XP=0, P0=3, F=None, PPM=4):
    a = F['a'] if F else Asm()
    K3 = which == 3
    sp = (lambda k, real=False: a.stamp(F['st'][(which, k)], real) if (which, k) in F['st'] else None) if F else a.stamp
    LB = 102400 if (F and K3) else 0
    SO, SB2 = (48, 12) if F else (4, 8)
    if F and not K3: P0 = PD
    if SC is None: SC = 'sc1' if K3 else ''
    nm = f"K{which}"
    NKS = 128 if K3 else 54
    CSEG = 512 if K3 else 224
    ACT, WP = (OBUF, WOP) if K3 else (UBUF, W2P)
    NST = 32 if K3 else 14
    MK = 30
    sW, sCT, sTT, sA, sB = 20, 21, 22, 23, 24
    VB, VA0, VA1, VWR, VRD, VE0, VE1, VE2 = 1, 5, 6, 7, 10, 11, 12, 13
    EP = 16
    ACC = 80
    BUF = 160
    if not F or K3: a(f"s_cmp_ge_u32 s2, 256"); a(f"s_cbranch_scc1 {'KF' if F else nm}_END")
    sp(0, True); sp(1)
    if not F: load_srds(a, [(16, KA_WS), (4, KA_X if K3 else KA_OUT)] + ([] if K3 else [(8, KA_B2)]))
    elif K3: load_srds(a, [(16, KA_WS), (4, KA_X), (8, KA_B1), (12, KA_B2), (48, KA_OUT)])
    a(f"s_mov_b32 s{MK}, 0xffff0000")
    if STAMPS and not F: a.wait(lg=0); sp(8)
    a(f"v_readfirstlane_b32 s{sW}, v0"); a(f"s_lshr_b32 s{sW}, s{sW}, 6")
    a(f"s_and_b32 s{sTT}, s2, 7"); a(f"s_lshl_b32 s{sTT}, s{sTT}, 2"); a("s_bfe_u32 s25, s2, 0x20003"); a(f"s_add_u32 s{sTT}, s{sTT}, s25")
    a(f"s_lshr_b32 s{sCT}, s2, 5")
    if K3: a(f"s_lshl_b32 s25, s{sW}, 5")
    else:
        a(f"s_mul_i32 s25, s{sW}, 13"); a(f"s_cmp_ge_u32 s{sW}, 1"); a("s_addc_u32 s25, s25, 0")
    a(f"s_mul_i32 s{sA}, s{sCT}, {NKS}"); a(f"s_add_u32 s{sA}, s{sA}, s25"); a(f"s_mul_i32 s{sA}, s{sA}, 5120"); a(f"s_add_u32 s{sA}, s{sA}, {WP}")
    a(f"s_mul_i32 s{sB}, s{sTT}, {2*CSEG*512}"); a("s_lshl_b32 s26, s25, 11"); a(f"s_add_u32 s{sB}, s{sB}, s26"); a(f"s_add_u32 s{sB}, s{sB}, {ACT}")
    la, g, tk = 14, 15, 16
    a(f"v_and_b32 v{la}, 63, v0"); a(f"v_lshrrev_b32 v{g}, 4, v{la}"); a(f"v_and_b32 v{tk}, 15, v0")
    a(f"v_lshlrev_b32 v{VA0}, 4, v{la}"); a(f"v_add_u32 v{VA1}, 4096, v{VA0}")
    a(f"v_lshlrev_b32 v17, 9, v{g}"); a(f"v_lshl_add_u32 v17, v{tk}, 4, v17")
    for tb in range(4):
        a(f"s_add_u32 s26, s{sW}, {tb}"); a("s_and_b32 s26, s26, 3")
        a("s_lshr_b32 s27, s26, 1"); a(f"s_mul_i32 s27, s27, {CSEG*512}"); a("s_and_b32 s28, s26, 1"); a("s_lshl_b32 s28, s28, 8"); a("s_add_u32 s27, s27, s28")
        a(f"v_add_u32 v{VB+tb}, s27, v17")
        if tb:
            a(f"s_mul_i32 s26, s26, 15360"); a(f"s_add_u32 s26, s26, {5120*(tb-1) + LB}")
            a(f"v_add_u32 v{VWR+tb-1}, s26, v{VA0}")
    if not K3:
        a(f"s_cmp_ge_u32 s{sW}, 2"); a("s_cselect_b32 s26, 0x40000000, 0")
        a(f"v_add_u32 v{VE2}, s26, v{VA0}"); a(f"v_add_u32 v{VE1}, s26, v{VA1}")
    ar = lambda r, n: f"a[{r}:{r+n-1}]"
    RING = PD + 1 if IL else PD
    def loadl(k):
        r = 36 * (k % RING); kk = k % 2 if XP else k
        sa, sb = 32 + 2 * (k % 2), 33 + 2 * (k % 2)
        L = []
        for b in range(5):
            if F and not K3 and k < PD: pass
            elif not K3 and k == 0:
                L.append(f"buffer_load_dwordx4 a[{r+16+4*b}:{r+19+4*b}], v{VE2 if b < 4 else VE1}, s[16:19], s{sa} offen offset:{1024*(b % 4)}")
            else:
                L.append(f"buffer_load_dwordx4 a[{r+16+4*b}:{r+19+4*b}], v{VA0 if b < 4 else VA1}, s[16:19], s{sa} offen offset:{1024*(b % 4)}")
            if b < 4: L.append(f"buffer_load_dwordx4 a[{r+4*b}:{r+4*b+3}], v{VB+b}, s[16:19], s{sb} offen")
        L[0] = [f"s_add_u32 s{sa}, s{sA}, {5120*kk}", f"s_add_u32 s{sb}, s{sB}, {2048*kk}", L[0]]
        return [(k, t if isinstance(t, list) else [t]) for t in L]
    def loads(k):
        for _, t in loadl(k):
            for u in t: a(u)
    LQ = [t for k in range(P0, NST) for t in loadl(k)] if IL else []
    if F and not K3: fpoll(a, "KF_PB", sTT, 3, sCT, 128, 0xffff); sp(9)
    for k in range(min(P0 if IL else PD, NST)):
        loads(k)
        if k == 0 and not F: sp(9)
    a(f"s_mul_i32 s26, s{sW}, 15360"); a(f"s_add_u32 s26, s26, {LB}"); a(f"v_add_u32 v{VRD}, s26, v{VA0}")
    if K3:
        TA, TB, TD, TV = 160, 180, 200, 204
        a("s_mul_i32 s41, s2, 9363"); a("s_lshr_b32 s41, s41, 16"); a("s_mul_i32 s42, s41, 7"); a("s_sub_u32 s42, s2, s42")
        if F:
            a(f"s_lshr_b32 s43, s{sTT}, 1"); a("s_lshl_b32 s43, s43, 12"); a(f"s_and_b32 s44, s{sTT}, 1"); a("s_lshl_b32 s44, s44, 5"); a("s_add_u32 s43, s43, s44")
            a(f"s_lshl_b32 s44, s{sCT}, 2"); a("s_add_u32 s43, s43, s44")
            a("s_lshl_b32 s44, s41, 8"); a("s_lshl_b32 s45, s42, 2"); a("s_add_u32 s44, s44, s45"); a("s_add_u32 s44, s44, 64")
            a("s_cmp_lt_u32 s2, 112"); a("s_cselect_b32 s44, s44, 0x40000000")
            a(f"v_lshlrev_b32 v240, 8, v{tk}"); a("v_add_u32 v240, s43, v240"); a(f"v_lshlrev_b32 v241, 12, v{tk}"); a("v_add_u32 v241, s44, v241")
            a("v_cmp_lt_u32 vcc, 15, v0"); a("v_cndmask_b32 v240, v240, v241, vcc")
            a("v_cmp_lt_u32 vcc, 31, v0"); a("v_bfrev_b32 v241, 2"); a("v_cndmask_b32 v240, v240, v241, vcc")
            PRE = F['pre4'](VA0, sW)
        a("s_mul_i32 s43, s41, 143360"); a(f"s_mul_i32 s44, s{sW}, {5*7168}"); a("s_add_u32 s43, s43, s44"); a("s_lshl_b32 s44, s42, 10"); a("s_add_u32 s43, s43, s44"); a(f"s_add_u32 s43, s43, {W1P}")
        a("s_cmp_lt_u32 s2, 112"); a("s_cselect_b32 s44, 0, 0x40000000")
        a(f"v_add_u32 v{TV}, s44, v{VA0}")
        a(f"v_and_b32 v{TV+1}, 1, v0"); a(f"v_mul_u32_u24 v{TV+1}, 1280, v{TV+1}"); a(f"v_sub_u32 v{TV+1}, 5120, v{TV+1}"); a(f"v_lshl_add_u32 v{TV+1}, v{g}, 4, v{TV+1}")
        a(f"s_mul_i32 s45, s{sW}, 320"); a(f"s_add_u32 s45, s45, {MODB}")
        for i in range(5):
            a(f"buffer_load_dwordx4 v[{TA+4*i}:{TA+4*i+3}], v{TV}, s[16:19], s43 offen")
            a(f"buffer_load_dwordx4 v[{TB+4*i}:{TB+4*i+3}], v{TV+1}, s[16:19], s45 offen offset:{64*i}")
            if i < 4: a("s_add_u32 s43, s43, 7168")
        a("s_lshr_b32 s46, s42, 1"); a("s_lshl_b32 s46, s46, 7"); a("s_and_b32 s47, s42, 1"); a("s_lshl_b32 s47, s47, 4"); a("s_add_u32 s46, s46, s47")
        a("s_cmp_lt_u32 s42, 6"); a("s_cselect_b32 s47, 5, 4")
        a("s_mul_i32 s41, s41, 448"); a("s_add_u32 s46, s46, s41"); a(f"s_mul_i32 s41, s{sW}, 14336"); a("s_add_u32 s46, s46, s41"); a(f"s_add_u32 s46, s46, {T12P}")
        a(f"v_lshlrev_b32 v{TV+2}, s47, v{g}"); a(f"v_mul_u32_u24 v{TV+3}, 7168, v{tk}"); a(f"v_add3_u32 v{TV+2}, v{TV+2}, v{TV+3}, s44")
        a(f"v_cmp_gt_u32 vcc, 2, v{tk}"); a(f"v_bfrev_b32 v{TV+3}, 2"); a(f"v_cndmask_b32 v{TV+2}, v{TV+3}, v{TV+2}, vcc")
    a(f"s_lshl_b32 s26, s{sTT}, 6"); a(f"s_lshl_b32 s27, s{sW}, 4"); a("s_add_u32 s26, s26, s27")
    a(f"s_mul_i32 s27, s{sCT}, 160")
    a("s_mul_i32 s36, s26, 1280"); a("s_add_u32 s36, s36, s27")
    a("s_lshr_b32 s28, s26, 5"); a("s_mul_i32 s28, s28, 40960"); a(f"s_mul_i32 s29, s{sCT}, 5120"); a("s_add_u32 s28, s28, s29")
    a("s_and_b32 s29, s26, 16"); a("s_lshl_b32 s29, s29, 4"); a("s_add_u32 s28, s28, s29")
    a(f"s_add_u32 s37, s28, {X1B}"); a(f"s_add_u32 s38, s28, {Y2B}")
    a(f"s_mul_i32 s39, s{sCT}, 320")
    RM0, RM4, FR0, FR4, MF0, MF4 = 17, 18, 19, 20, 21, 22
    a(f"v_mul_u32_u24 v{RM4}, 1280, v{tk}"); a(f"v_lshl_add_u32 v{RM0}, v{g}, 4, v{RM4}"); a(f"v_lshl_add_u32 v{RM4}, v{g}, 3, v{RM4}")
    a(f"v_lshlrev_b32 v{FR0}, 9, v{g}"); a(f"v_lshl_add_u32 v{FR0}, v{tk}, 4, v{FR0}")
    a(f"v_lshrrev_b32 v{FR4}, 1, v{g}"); a(f"v_lshlrev_b32 v{FR4}, 9, v{FR4}"); a(f"v_lshl_add_u32 v{FR4}, v{tk}, 4, v{FR4}")
    a(f"v_and_b32 v23, 1, v{g}"); a(f"v_lshl_add_u32 v{FR4}, v23, 3, v{FR4}"); a(f"v_add_u32 v{FR4}, 4096, v{FR4}")
    a(f"v_lshlrev_b32 v{MF0}, 5, v{g}"); a(f"v_lshlrev_b32 v{MF4}, 4, v{g}")
    XI, G1, G2 = 24, 36, 56
    def eploads():
        if K3:
            a(f"buffer_load_dwordx4 v[{XI}:{XI+3}], v{RM0}, s[4:7], s36 offen"); a(f"buffer_load_dwordx4 v[{XI+4}:{XI+7}], v{RM0}, s[4:7], s36 offen offset:64")
            a(f"buffer_load_dwordx2 v[{XI+8}:{XI+9}], v{RM4}, s[4:7], s36 offen offset:128")
        elif not F:
            a(f"buffer_load_dwordx4 v[{XI}:{XI+3}], v{FR0}, s[16:19], s37 offen"); a(f"buffer_load_dwordx4 v[{XI+4}:{XI+7}], v{FR0}, s[16:19], s37 offen offset:2048")
            a(f"buffer_load_dwordx2 v[{XI+8}:{XI+9}], v{FR4}, s[16:19], s37 offen")
        for G, sec in ([(G1, 2), (G2, 4)] if K3 else [(G1, 5)]):
            a(f"s_add_u32 s40, s39, {MODF + 2560*sec}")
            for i, off in enumerate((0, 16, 128, 144)): a(f"buffer_load_dwordx4 v[{G+4*i}:{G+4*i+3}], v{MF0}, s[16:19], s40 offen offset:{off}")
            a(f"buffer_load_dwordx4 v[{G+16}:{G+19}], v{MF4}, s[16:19], s40 offen offset:256")
        if not K3:
            a(f"v_lshlrev_b32 v23, 3, v{g}")
            a(f"buffer_load_dwordx4 v[{G2}:{G2+3}], v{MF4}, s[{SB2}:{SB2+3}], s27 offen"); a(f"buffer_load_dwordx4 v[{G2+4}:{G2+7}], v{MF4}, s[{SB2}:{SB2+3}], s27 offen offset:64")
            a(f"buffer_load_dwordx2 v[{G2+8}:{G2+9}], v23, s[{SB2}:{SB2+3}], s27 offen offset:128")
    acc = lambda tb, b: ACC + 4 * (5 * tb + b)
    sp(2)
    for k in range(NST):
        r = 36 * (k % RING)
        if k == 1: sp(3)
        if k == NST // 2: sp(4)
        order = [(tb, b) for b in range(5) for tb in range(4)]
        if k == NST - 1: order = [(tb, b) for tb in (1, 2, 3, 0) for b in range(5)]
        for i, (tb, b) in enumerate(order):
            D = vr(acc(tb, b), 4)
            a(f"v_mfma_f32_16x16x32_bf16 {D}, {ar(r+16+4*b,4)}, {ar(r+4*tb,4)}, {'0' if k == 0 else D}")
            if LQ and LQ[0][0] <= k + PD and (i % 2 == 1 or LQ[0][0] < k + PD):
                for u in LQ.pop(0)[1]: a(u)
            if F and K3 and not LQ and k > NST - PD - 1 and PRE and i % PPM == 1:
                for t, tok in PRE.pop(0): a(t, tok=tok)
            if k == NST - 1 and i >= 7 and i < 22 and i - 7 < 15:
                j = i - 7; tb2, b2 = 1 + j // 5, j % 5
                a(f"ds_write_b128 v{VWR+tb2-1}, {vr(acc(tb2, b2), 4)} offset:{1024*b2}")
        if k + PD < NST and not IL: loads(k + PD)
        if K3 and k == 8:
            for i in range(5): a(f"v_mfma_f32_16x16x32_bf16 v[{TD}:{TD+3}], v[{TA+4*i}:{TA+4*i+3}], v[{TB+4*i}:{TB+4*i+3}], {'0' if i == 0 else vr(TD, 4)}")
        if K3 and k == 9: a(f"buffer_store_dwordx4 v[{TD}:{TD+3}], v{TV+2}, s[16:19], s46 offen {SC}")
        if k == max(0, NST - PD - 1): eploads()
    for j in (13, 14): a(f"ds_write_b128 v{VWR+2}, {vr(acc(3, j % 5), 4)} offset:{1024*(j % 5)}")
    sp(5)
    a.barrier()
    sp(6)
    R = BUF
    for i in range(3):
        for b in range(5): a(f"ds_read_b128 {vr(R+20*i+4*b, 4)}, v{VRD} offset:{5120*i+1024*b}")
    for i in range(3):
        for e in range(20): a(f"v_add_f32 v{ACC+e}, v{ACC+e}, v{R+20*i+e}")
    T, U, W = 100, 120, 140
    S1, S2 = 150, 151
    for i in range(10):
        x, y = ACC + 2*i, ACC + 2*i + 1
        rnd2(a, x, y, T, MK)
        if not K3:
            unpack2(a, U, U+1, G2+i, MK)
            a(f"v_add_f32 v{x}, v{x}, v{U}"); a(f"v_add_f32 v{y}, v{y}, v{U+1}")
            rnd2(a, x, y, T, MK)
        a(f"v_mul_f32 v{x}, v{x}, v{G1+2*i}"); a(f"v_mul_f32 v{y}, v{y}, v{G1+2*i+1}")
        rnd2(a, x, y, T, MK)
        unpack2(a, U, U+1, XIL[i] if (F and not K3) else XI+i, MK)
        a(f"v_add_f32 v{x}, v{x}, v{U}"); a(f"v_add_f32 v{y}, v{y}, v{U+1}")
        if K3:
            rnd2(a, x, y, XIL[i] if F else T+2+i, MK)
            if i == 0:
                a(f"v_add_f32 v{S1}, v{x}, v{y}"); a(f"v_mul_f32 v{S2}, v{x}, v{x}")
            else:
                a(f"v_add_f32 v{S1}, v{S1}, v{x}"); a(f"v_fmac_f32 v{S2}, v{x}, v{x}"); a(f"v_add_f32 v{S1}, v{S1}, v{y}")
            a(f"v_fmac_f32 v{S2}, v{y}, v{y}")
            a(f"v_mul_f32 v{x}, v{x}, v{G2+2*i}"); a(f"v_mul_f32 v{y}, v{y}, v{G2+2*i+1}")
            a(f"v_cvt_pk_bf16_f32 v{W+i}, v{x}, v{y}")
        else:
            a(f"v_cvt_pk_bf16_f32 v{T+2+i}, v{x}, v{y}")
    P = T + 2
    if K3:
        for base, so in ((W, 38), (P, 37))[:1 if F else 2]:
            a(f"buffer_store_dwordx4 {vr(base,4)}, v{FR0}, s[16:19], s{so} offen {SC}"); a(f"buffer_store_dwordx4 {vr(base+4,4)}, v{FR0}, s[16:19], s{so} offen offset:2048 {SC}")
            a(f"buffer_store_dwordx2 {vr(base+8,2)}, v{FR4}, s[16:19], s{so} offen {SC}")
        for w in (16, 32):
            xsum_swap(a, S1, U, w); xsum_swap(a, S2, U+1, w)
        a(f"v_lshlrev_b32 v{U}, 3, v{tk}")
        a(f"s_lshl_b32 s26, s{sTT}, 9"); a(f"s_lshl_b32 s27, s{sW}, 7"); a("s_add_u32 s26, s26, s27"); a(f"s_lshl_b32 s27, s{sCT}, 14"); a("s_add_u32 s26, s26, s27")
        a(f"s_add_u32 s26, s26, {STAT}")
        a(f"buffer_store_dwordx2 v[{S1}:{S2}], v{U}, s[16:19], s26 offen {SC}")
    else:
        o = f"s[{SO}:{SO+3}]"
        a(f"buffer_store_dwordx4 {vr(P,4)}, v{RM0}, {o}, s36 offen {SC}"); a(f"buffer_store_dwordx4 {vr(P+4,4)}, v{RM0}, {o}, s36 offen offset:64 {SC}")
        a(f"buffer_store_dwordx2 {vr(P+8,2)}, v{RM4}, {o}, s36 offen offset:128 {SC}")
    sp(7)
    if F:
        if K3: assert not PRE
        return
    a.dump(16, which, 10)
    a.label(f"{nm}_END", flush=False)
    a("s_endpgm")
    return dict(name=f"k{which}_kernel", asm=a, grid=256, block=256, lds=61440, vgprs=224 + 36 * RING, accum=224)
```

```python
from common import *
class Rec:
    def __init__(self): self.l = []
    def __call__(self, text, tok=None): self.l.append((text, tok))
def gen_k4(PFA=4, SC='sc1', P0=15, LPM=3, MAP=1, FILL=3, TAILF=6, DRY=0, F=None, PPM=2):
    a = F['a'] if F else Asm()
    sp = (lambda k, real=False: a.stamp(F['st'][(4, k)], real) if (4, k) in F['st'] else None) if F else a.stamp
    if F: P0 = F.get('P0', 16)
    MK = 30
    sW, sCT, sTT, sA, sB, sM0 = 20, 21, 22, 23, 24, 25
    L16, VB, VT = 1, 2, 3
    TL = 143360
    ACC = 32
    AB = 88
    NBA = 8
    EP = 120
    if not F:
        a("s_cmp_ge_u32 s2, 256"); a("s_cbranch_scc1 K4_END")
        sp(0, True); sp(1)
        load_srds(a, [(16, KA_WS), (8, KA_B1)])
    else: fsig(a, 240); sp(1)
    a(f"s_mov_b32 s{MK}, 0xffff0000")
    a(f"v_readfirstlane_b32 s{sW}, v0"); a(f"s_lshr_b32 s{sW}, s{sW}, 6")
    if MAP == 0:
        a(f"s_and_b32 s{sTT}, s2, 7"); a(f"s_lshl_b32 s{sTT}, s{sTT}, 1"); a("s_bfe_u32 s26, s2, 0x10003"); a(f"s_add_u32 s{sTT}, s{sTT}, s26")
        a(f"s_lshr_b32 s{sCT}, s2, 4")
    else:
        a(f"s_bfe_u32 s{sTT}, s2, 0x20001"); a(f"s_lshl_b32 s{sTT}, s{sTT}, 2"); a("s_bfe_u32 s26, s2, 0x20003"); a(f"s_add_u32 s{sTT}, s{sTT}, s26")
        a(f"s_and_b32 s{sCT}, s2, 1"); a(f"s_lshl_b32 s{sCT}, s{sCT}, 3"); a("s_lshr_b32 s26, s2, 5"); a(f"s_add_u32 s{sCT}, s{sCT}, s26")
    a(f"s_mul_i32 s{sA}, s{sCT}, 143360"); a(f"s_add_u32 s{sA}, s{sA}, {W1P}")
    a(f"s_mul_i32 s{sM0}, s{sW}, 7168"); a(f"s_add_u32 s{sA}, s{sA}, s{sM0}")
    a(f"s_lshl_b32 s26, s{sTT}, 2"); a(f"s_add_u32 s26, s26, s{sW}")
    a(f"s_mul_i32 s{sB}, s26, 40960"); a(f"s_add_u32 s{sB}, s{sB}, {Y2B}")
    la, g, tk = 4, 5, 6
    a(f"v_and_b32 v{la}, 63, v0"); a(f"v_lshrrev_b32 v{g}, 4, v{la}"); a(f"v_and_b32 v{tk}, 15, v0")
    a(f"v_lshlrev_b32 v{L16}, 4, v{la}")
    a(f"v_lshlrev_b32 v{VB}, 9, v{g}"); a(f"v_lshl_add_u32 v{VB}, v{tk}, 4, v{VB}")
    ar = lambda r, n: f"a[{r}:{r+n-1}]"
    br = lambda ks, tb: ar(8*ks + 4*tb + (92 if (F and ks >= 16) else 0), 4)
    U = []
    def chunk(c):
        for h in range(2):
            pre = [(f"s_add_u32 s27, s{sA}, {28672*c + 4096*h}", None), (f"s_add_u32 m0, s{sM0}, {28672*c + 4096*h}", None)]
            for i in range(4 if h == 0 else 3):
                U.append(pre + [(f"buffer_load_dwordx4 v{L16}, s[16:19], s27 offen offset:{1024*i} lds", ('c', c))]); pre = []
    def bl(ks):
        pre = [(f"s_add_u32 s28, s{sB}, {2048*ks}", None)] if ks % 2 == 0 else []
        for tb in range(2):
            U.append(pre + [(f"buffer_load_dwordx4 {br(ks, tb)}, v{VB}, s[16:19], s28 offen offset:{2048*(ks % 2) + 256*tb}", None)]); pre = []
    ST = EP + 20
    B1 = ST + 8
    def t12():
        r = Rec()
        r("v_cmp_lt_u32 vcc, 111, v0"); r(f"v_mov_b32 v8, {7168-448}"); r("v_cndmask_b32 v7, 0, v8, vcc")
        r("v_lshl_add_u32 v7, v0, 2, v7")
        r("v_cmp_lt_u32 vcc, 223, v0"); r("v_mov_b32 v8, 0x40000000"); r("v_cndmask_b32 v7, v7, v8, vcc")
        r(f"s_mul_i32 s29, s{sCT}, 448"); r(f"s_add_u32 s29, s29, {T12P}")
        for i in range(4):
            if i: r("s_add_u32 s29, s29, 14336")
            r(f"buffer_load_dword v{EP+i}, v7, s[16:19], s29 offen{' sc1' if F else ''}")
            U.append(r.l); r = Rec()
    def stats():
        r = Rec()
        r(f"v_lshlrev_b32 v9, 15, v{g}"); r(f"v_lshl_add_u32 v9, v{tk}, 3, v9")
        r("s_lshl_b32 s29, s26, 8"); r(f"s_add_u32 s29, s29, {STAT}"); r("s_add_u32 s31, s29, 16384")
        for tb in range(2):
            for h in range(2):
                r(f"buffer_load_dwordx2 {vr(ST+4*tb+2*h, 2)}, v9, s[16:19], s{(29, 31)[h]} offen offset:{128*tb}")
                U.append(r.l); r = Rec()
    def b1l():
        r = Rec()
        r(f"v_lshlrev_b32 v10, 4, v{g}"); r(f"v_lshlrev_b32 v11, 3, v{g}")
        r(f"s_mul_i32 s29, s{sCT}, 224"); r("v_add_u32 v10, s29, v10"); r("v_add_u32 v11, s29, v11")
        for p in range(3):
            r(f"buffer_load_dwordx4 {vr(B1+4*p, 4)}, v10, s[8:11], 0 offen offset:{64*p}"); U.append(r.l); r = Rec()
        r(f"buffer_load_dwordx2 {vr(B1+12, 2)}, v11, s[8:11], 0 offen offset:192"); U.append(r.l)
    if F: b1l()
    for c in range(5):
        if c == 2: t12()
        if c == 3:
            stats()
            if not F: b1l()
        if not F or c >= 3: chunk(c)
        for ks in range(4*c, 4*c+4): bl(ks)
    def issue(n=1):
        for _ in range(n):
            if U:
                for t, tok in U.pop(0): a(t, tok=tok)
    if F:
        issue(4)
        PRE = F['pre5'](L16, sW)
        a(f"s_lshl_b32 s35, s{sTT}, 12"); a(f"s_lshl_b32 s36, s{sCT}, 2"); a("s_add_u32 s35, s35, s36"); a("s_add_u32 s35, s35, 128")
        a(f"v_lshlrev_b32 v3, 8, v{tk}"); a("v_add_u32 v3, s35, v3"); a("v_cmp_lt_u32 vcc, 15, v0"); a("v_bfrev_b32 v7, 2"); a("v_cndmask_b32 v3, v3, v7, vcc")
    else: issue(P0)
    a(f"v_add_u32 v12, 0x10000, v{L16}"); a(f"v_add_u32 v13, 0x20000, v{L16}")
    T1, T2 = 164, 192
    MU, RS = 14, 16
    BF = 220
    f2 = Rec()
    for i in range(1, 4): f2(f"v_add_f32 v{EP}, v{EP}, v{EP+i}")
    f2(f"v_lshlrev_b32 v8, 2, v0"); f2(f"v_add_u32 v8, {TL}, v8"); f2(f"ds_write_b32 v8, v{EP}")
    f3 = Rec()
    a(f"v_lshlrev_b32 v26, 5, v{g}"); a(f"v_add_u32 v26, {TL}, v26"); a(f"v_lshlrev_b32 v27, 4, v{g}"); a(f"v_add_u32 v27, {TL}, v27")
    tr = Rec()
    for T, o in ((T1, 0), (T2, 448)):
        for b in range(6): tr(f"ds_read_b128 {vr(T+4*b, 4)}, v26 offset:{o + 128*(b >> 1) + 16*(b & 1)}")
        tr(f"ds_read_b128 {vr(T+24, 4)}, v27 offset:{o + 384}")
    st = Rec()
    for tb in range(2):
        s1, s2 = ST + 4*tb, ST + 4*tb + 1
        st(f"v_add_f32 v{s1}, v{s1}, v{s1+2}"); st(f"v_add_f32 v{s2}, v{s2}, v{s2+2}")
        for w in (16, 32): xsum_swap(st, s1, 18, w); xsum_swap(st, s2, 19, w)
        st(f"v_mul_f32 v{s1}, {f32(1/640)}, v{s1}"); st(f"v_mul_f32 v{s2}, {f32(1/640)}, v{s2}")
        st(f"v_fma_f32 v{s2}, -v{s1}, v{s1}, v{s2}"); st(f"v_max_f32 v{s2}, 0, v{s2}")
        rnd2(st, s1, s2, 18, MK)
        st(f"v_add_f32 v{s2}, {f32(1e-5)}, v{s2}"); rnd1(st, s2)
        st(f"v_sqrt_f32 v{s2}, v{s2}"); rnd1(st, s2)
        st(f"v_rcp_f32 v{RS+tb}, v{s2}"); st(f"v_sub_f32 v{MU+tb}, 0, v{s1}")
        st(f"v_mul_f32 v{MU+tb}, v{MU+tb}, v{RS+tb}")
    for i, x in enumerate(st.l):
        f3.l.append(x)
        if i % 3 == 2 and tr.l: f3.l.append(tr.l.pop(0))
    f3.l += tr.l
    for i in range(14): unpack2(f3, BF+2*i, BF+2*i+1, B1+i, MK)
    f3(f"v_mov_b32 v24, v{RS+1}"); f3(f"v_mov_b32 v25, v{RS+1}"); f3(f"v_mov_b32 v{RS+1}, v{RS}")
    f3(f"v_sub_f32 v{MU}, v{MU}, v{MU+1}")
    for i in range(28):
        f3(f"v_fmac_f32 v{T2+i}, v{T1+i}, v{MU+1}")
        f3(f"v_fma_f32 v{T1+i}, v{T1+i}, v{MU}, v{T2+i}")
    a(f"v_lshrrev_b32 v28, 1, v{g}"); a("v_lshlrev_b32 v28, 9, v28"); a(f"v_lshl_add_u32 v28, v{tk}, 4, v28"); a(f"v_and_b32 v19, 1, v{g}"); a("v_lshl_add_u32 v28, v19, 3, v28")
    a(f"s_mul_i32 s32, s26, {224*512}"); a(f"s_mul_i32 s33, s{sCT}, 7168"); a("s_add_u32 s32, s32, s33"); a(f"s_add_u32 s32, s32, {UBUF}")
    a("s_add_u32 s33, s32, 4096"); a("s_add_u32 s34, s32, 6144")
    acc = lambda tb, b: ACC + 4 * (7 * tb + b)
    def epi(b):
        ch = []
        for tb in range(2):
            for h in range(2):
                r = Rec(); i = 2*b + h; x = acc(tb, b) + 2*h; t = 20 + 2*tb + h
                E = (T1, T2)[tb] + 2*i
                r(f"v_pk_fma_f32 {vr(x, 2)}, {vr(x, 2)}, {vr((RS, 24)[tb], 2)}, {vr(E, 2)}")
                rnd2(r, x, x+1, t, MK)
                r(f"v_pk_add_f32 {vr(x, 2)}, {vr(x, 2)}, {vr(BF+2*i, 2)}")
                r(f"v_cvt_pk_bf16_f32 v{t}, v{x}, v{x+1}"); r(f"v_pk_max_i16 v{t}, v{t}, 0")
                unpack2(r, x, x+1, t, MK)
                r(f"v_pk_mul_f32 {vr(x, 2)}, {vr(x, 2)}, {vr(x, 2)}")
                r(f"v_cvt_pk_bf16_f32 v{acc(tb, b & ~1) + 2*(b & 1) + h}, v{x}, v{x+1}")
                ch.append(r.l)
        out = [c[k] for k in range(len(ch[0])) for c in ch]
        for tb in range(2):
            d = acc(tb, b & ~1)
            if b in (1, 3): out.append((f"buffer_store_dwordx4 {vr(d, 4)}, v{VB}, s[16:19], s32 offen offset:{2048*(b // 2) + 256*tb} {SC}", None))
            if b == 5: out.append((f"buffer_store_dwordx4 {vr(d, 4)}, v{VB}, s[16:19], s33 offen offset:{256*tb} {SC}", None))
            if b == 6: out.append((f"buffer_store_dwordx2 {vr(d, 2)}, v28, s[16:19], s34 offen offset:{256*tb} {SC}", None))
        return out
    seq = [(ks, b) for ks in range(16) for b in range(7)] + [(ks, b) for b in range(7) for ks in range(16, 20)]
    def rd(i):
        ks, b = seq[i]; off = ks * 7168 + b * 1024
        base = (L16, 12, 13)[off >> 16]
        a(f"ds_read_b128 {vr(AB + 4*(i % NBA), 4)}, v{base} offset:{off & 0xffff}")
    sp(2)
    if DRY:
        a.wait(lg=0)
        a("s_mov_b64 exec, 0")
        for w in range(3): a(f"s_cmp_eq_u32 s{sW}, {w}"); a(f"s_cbranch_scc1 K4_DRY{w}")
        a("s_branch K4_DRY3")
        a.raw("K4_RET:"); a("s_mov_b64 exec, -1"); a.raw("  s_waitcnt lgkmcnt(0)"); a.nop(16)
    dry = {122: 1, 129: 2, 136: 3}
    if F: fpoll(a, "KF_PA", sTT, 4, sCT, 0, 0x7fffff); sp(9); issue(P0)
    else: a.wait_tok(('c', 0)); a.barrier()
    sp(3)
    for i in range(PFA): rd(i)
    FL = []; m = 0
    for i, (ks, b) in enumerate(seq):
        if i == 70: sp(4)
        if i == 112:
            while U: issue()
            for t, tok in FL: a(t)
            FL = []
            sp(5)
        if i > 112 and i % 4 == 0:
            for t, tok in FL: a(t)
            FL = epi(b - 1)
        if DRY and i in dry: a("s_cbranch_execz K4_RET"); a.raw(f"K4_DRY{dry[i]}:")
        for tb in range(2):
            D = vr(acc(tb, b), 4)
            a(f"v_mfma_f32_16x16x32_bf16 {D}, {vr(AB + 4*(i % NBA), 4)}, {br(ks, tb)}, {'0' if ks == 0 else D}")
            m += 1
            if tb == 0:
                n = i + PFA
                if n < len(seq):
                    if n % 28 == 0:
                        while ('c', n // 28) not in a.tok or any(tok == ('c', n // 28) for u in U for _, tok in u): issue()
                        if DRY and n == 112: a.wait(vm=0)
                        if not F or n >= 84: a.wait_tok(('c', n // 28)); a("s_barrier")
                        if DRY and n == 112: a.raw(f"K4_DRY0:"); assert not U
                        if n == 56: FL += f2.l
                        if n == 84: FL += f3.l
                    rd(n)
            if U and m % LPM == 0: issue()
            if F and PRE and m % PPM == 0 and (i >= 112 or (i >= 102 and len(PRE) > 20)):
                for t, tok in PRE.pop(0): a(t, tok=tok)
            for _ in range(TAILF if i >= 112 else FILL):
                if FL: a(FL.pop(0)[0])
    for t, tok in FL + epi(6): a(t)
    if DRY: a("s_cbranch_execz K4_RET")
    sp(6)
    if F:
        assert not PRE
        fsig(a, 3); sp(7)
        return
    a.dump(16, 4, 7)
    a.label("K4_END", flush=False)
    a("s_endpgm")
    return dict(name="k4_kernel", asm=a, grid=256, block=256, lds=143360 + 1024, vgprs=256 + 160, accum=256)
```

```python
from common import *
from k35 import gen_k35
from k4 import gen_k4
def gen_kf(p3={}, p4={}, p5={}, MAP=0, P0=16):
    a = Asm()
    def pre4(VL, sW):
        if MAP == 0: a("s_lshr_b32 s52, s2, 4")
        else: a("s_and_b32 s52, s2, 1"); a("s_lshl_b32 s52, s52, 3"); a("s_lshr_b32 s53, s2, 5"); a("s_add_u32 s52, s52, s53")
        a("s_mul_i32 s52, s52, 143360"); a(f"s_add_u32 s52, s52, {W1P}"); a(f"s_mul_i32 s53, s{sW}, 7168"); a("s_add_u32 s52, s52, s53")
        U = []
        for c in range(3):
            for h in range(2):
                pre = [(f"s_add_u32 s54, s52, {28672*c + 4096*h}", None), (f"s_add_u32 m0, s53, {28672*c + 4096*h}", None)]
                for i in range(4 if h == 0 else 3):
                    U.append(pre + [(f"buffer_load_dwordx4 v{VL}, s[16:19], s54 offen offset:{1024*i} lds", ('c', c))]); pre = []
        return U
    def pre5(VL, sW):
        a(f"s_mul_i32 s53, s{sW}, 13"); a(f"s_cmp_ge_u32 s{sW}, 1"); a("s_addc_u32 s53, s53, 0")
        a("s_lshr_b32 s52, s2, 5"); a("s_mul_i32 s52, s52, 54"); a("s_add_u32 s52, s52, s53"); a("s_mul_i32 s52, s52, 5120"); a(f"s_add_u32 s52, s52, {W2P}")
        a(f"s_cmp_ge_u32 s{sW}, 2"); a("s_cselect_b32 s53, 0x40000000, 0"); a(f"v_add_u32 v30, s53, v{VL}")
        U = []
        for k in (4, 5, 0, 1, 2, 3):
            for b in range(5):
                pre = [(f"s_add_u32 s54, s52, {5120*k + 4096*(b // 4)}", None)] if b % 4 == 0 else []
                U.append(pre + [(f"buffer_load_dwordx4 a[{36*k+16+4*b}:{36*k+19+4*b}], v{30 if k == 0 else VL}, s[16:19], s54 offen offset:{1024*(b % 4)}", None)])
        return U
    st = {(3, 0): 0, (3, 1): 1, (3, 5): 2, (3, 7): 3, (4, 1): 4, (4, 9): 5, (4, 5): 6, (4, 6): 7, (4, 7): 8, (5, 9): 9, (5, 5): 10, (5, 7): 11}
    F = dict(a=a, st=st, pre4=pre4, pre5=pre5, P0=P0)
    gen_k35(3, F=F, **p3)
    gen_k4(F=F, MAP=MAP, **p4)
    gen_k35(5, F=F, **p5)
    a.dump(16, 3, 12)
    a.label("KF_END", flush=False)
    a("s_endpgm")
    if TOUCH: a.raw("KF_E_T:"); a.raw("  s_branch K1_TRET")
    return dict(name="kf_kernel", asm=a, grid=256, block=256, lds=163840, vgprs=512, accum=256)
```

```python
from asmlib import *
MODF = 0
MODB = 16384
T12P = 0x8000
STAT = 0x60000
NBUF = 0x100000
HBUF = 0x400000
X1B  = 0x700000
Y2B  = 0xA00000
OBUF = 0x1000000
UBUF = 0x2000000
WOP  = 0x2800000
W2P  = 0x2E00000
W1P  = 0x3100000
MPAY = 0x3400000
HFL  = 0x3500000
FLG  = 0x3600000
XIL = list(range(248, 256)) + [29, 31]
TOUCH = int(os.environ.get('TOUCH', '0'))
WS_BYTES = 268435456
KA_X, KA_K, KA_V, KA_WQ, KA_WO, KA_BX, KA_W1, KA_B1, KA_W2, KA_B2, KA_C, KA_WMOD, KA_OUT, KA_DBG, KA_WS = [8 * i for i in range(15)]
SZ = {KA_X: 2048*640*2, KA_K: 32*2048*128*2, KA_V: 32*2048*128*2, KA_WQ: 640*4096*2, KA_WO: 4096*640*2, KA_W1: 640*1728*2,
      KA_B1: 1728*2, KA_W2: 1728*640*2, KA_B2: 640*2, KA_C: 640*2, KA_WMOD: 640*3840*2, KA_OUT: 2048*640*2, KA_WS: WS_BYTES, KA_DBG: 256}
LOG2E = 1.4426950408889634
import struct
def f32(x): return "0x%08x" % struct.unpack('<I', struct.pack('<f', x))[0]

def load_srds(a, items):
    for b, off in items: a(f"s_load_dwordx2 s[{b}:{b+1}], s[0:1], {off}")
    for b, off in items:
        a(f"s_mov_b32 s{b+2}, {SZ[off]}"); a(f"s_mov_b32 s{b+3}, 0x00020000")

def rnd2(a, x, y, t, mask):
    a(f"v_cvt_pk_bf16_f32 v{t}, v{x}, v{y}")
    a(f"v_lshlrev_b32 v{x}, 16, v{t}")
    a(f"v_and_b32 v{y}, s{mask}, v{t}")
def unpack2(a, x, y, t, mask):
    a(f"v_lshlrev_b32 v{x}, 16, v{t}")
    a(f"v_and_b32 v{y}, s{mask}, v{t}")
def rnd1(a, x):
    a(f"v_cvt_pk_bf16_f32 v{x}, v{x}, v{x}")
    a(f"v_lshlrev_b32 v{x}, 16, v{x}")
def xsum_swap(a, x, t, which):
    a(f"v_mov_b32 v{t}, v{x}")
    a(f"v_permlane{which}_swap_b32 v{x}, v{t}")
    a(f"v_add_f32 v{x}, v{x}, v{t}")
def fpoll(a, name, sHi, sh, sLo, off, mask, PSL=1, mid=None, setup=True):
    if setup:
        a(f"s_lshl_b32 s58, s{sHi}, {sh}"); a(f"s_add_u32 s58, s58, s{sLo}"); a("s_lshl_b32 s58, s58, 8"); a(f"s_add_u32 s58, s58, {FLG + off}")
        a("v_and_b32 v242, 31, v0"); a("v_lshlrev_b32 v242, 2, v242")
    a("s_mov_b32 s60, 200000")
    if mid: mid()
    a.label(f"{name}_L", flush=False)
    a("buffer_load_dword v243, v242, s[16:19], s58 offen sc1")
    a("v_cmp_ne_u32 vcc, 0, v243")
    a.nop(1)
    a("s_mov_b32 s61, vcc_lo")
    a(f"s_and_b32 s59, s61, {mask}"); a(f"s_cmp_eq_u32 s59, {mask}"); a(f"s_cbranch_scc1 {name}_A")
    a("s_sub_u32 s60, s60, 1"); a(f"s_cbranch_scc1 {name}_A")
    a(f"s_sleep {PSL}"); a(f"s_branch {name}_L")
    if TOUCH and setup: a.raw(f"{name}_T:"); a.raw("  s_branch K1_TRET")
    a.label(f"{name}_A", flush=False)
def fsig(a, v):
    a.wait(vm=0); a.barrier()
    a("v_mov_b32 v244, 1"); a(f"s_mov_b32 s59, {FLG}")
    a(f"buffer_store_dword v244, v{v}, s[16:19], s59 offen sc1")
```

```python
from common import *
def gen_k35(which, PD=6, SC=None, IL=1, XP=0, P0=3, F=None, PPM=4, NL=5, MSK=1):
    a = F['a'] if F else Asm()
    K3 = which == 3
    sp = (lambda k, real=False: a.stamp(F['st'][(which, k)], real) if (which, k) in F['st'] else None) if F else a.stamp
    LB = 102400 if F else 0
    SO, SB2 = (48, 12) if F else (4, 8)
    if F and not K3: P0 = PD
    if SC is None: SC = 'sc1' if K3 else ''
    nm = f"K{which}"
    NKS = 128 if K3 else 54
    CSEG = 512 if K3 else 224
    ACT, WP = (OBUF, WOP) if K3 else (UBUF, W2P)
    NST = 32 if K3 else 14
    MK = 30
    sW, sCT, sTT, sA, sB = 20, 21, 22, 23, 24
    VB, VA0, VA1, VWR, VRD, VE0, VE1, VE2 = 1, 5, 6, 7, 10, 11, 12, 13
    EP = 16
    ACC = 80
    BUF = 160
    if not F or K3: a(f"s_cmp_ge_u32 s2, 256"); a(f"s_cbranch_scc1 {'KF' if F else nm}_END")
    sp(0, True); sp(1)
    if not F: load_srds(a, [(16, KA_WS), (4, KA_X if K3 else KA_OUT)] + ([] if K3 else [(8, KA_B2)]))
    elif K3: load_srds(a, [(16, KA_WS), (4, KA_X), (8, KA_B1), (12, KA_B2), (48, KA_OUT)])
    a(f"s_mov_b32 s{MK}, 0xffff0000")
    if STAMPS and not F: a.wait(lg=0); sp(8)
    a(f"v_readfirstlane_b32 s{sW}, v0"); a(f"s_lshr_b32 s{sW}, s{sW}, 6")
    a(f"s_and_b32 s{sTT}, s2, 7"); a(f"s_lshl_b32 s{sTT}, s{sTT}, 2"); a("s_bfe_u32 s25, s2, 0x20003"); a(f"s_add_u32 s{sTT}, s{sTT}, s25")
    a(f"s_lshr_b32 s{sCT}, s2, 5")
    if K3: a(f"s_lshl_b32 s25, s{sW}, 5")
    else:
        a(f"s_mul_i32 s25, s{sW}, 13"); a(f"s_cmp_ge_u32 s{sW}, 1"); a("s_addc_u32 s25, s25, 0")
    a(f"s_mul_i32 s{sA}, s{sCT}, {NKS}"); a(f"s_add_u32 s{sA}, s{sA}, s25"); a(f"s_mul_i32 s{sA}, s{sA}, 5120"); a(f"s_add_u32 s{sA}, s{sA}, {WP}")
    a(f"s_mul_i32 s{sB}, s{sTT}, {2*CSEG*512}"); a("s_lshl_b32 s26, s25, 11"); a(f"s_add_u32 s{sB}, s{sB}, s26"); a(f"s_add_u32 s{sB}, s{sB}, {ACT}")
    la, g, tk = 14, 15, 16
    a(f"v_and_b32 v{la}, 63, v0"); a(f"v_lshrrev_b32 v{g}, 4, v{la}"); a(f"v_and_b32 v{tk}, 15, v0")
    a(f"v_lshlrev_b32 v{VA0}, 4, v{la}"); a(f"v_add_u32 v{VA1}, 4096, v{VA0}")
    a(f"v_lshlrev_b32 v17, 9, v{g}"); a(f"v_lshl_add_u32 v17, v{tk}, 4, v17")
    for tb in range(4):
        a(f"s_add_u32 s26, s{sW}, {tb}"); a("s_and_b32 s26, s26, 3")
        a("s_lshr_b32 s27, s26, 1"); a(f"s_mul_i32 s27, s27, {CSEG*512}"); a("s_and_b32 s28, s26, 1"); a("s_lshl_b32 s28, s28, 8"); a("s_add_u32 s27, s27, s28")
        a(f"v_add_u32 v{VB+tb}, s27, v17")
        if tb:
            a(f"s_mul_i32 s26, s26, 15360"); a(f"s_add_u32 s26, s26, {5120*(tb-1) + LB}")
            a(f"v_add_u32 v{VWR+tb-1}, s26, v{VA0}")
    if not K3:
        a(f"s_cmp_ge_u32 s{sW}, 2"); a("s_cselect_b32 s26, 0x40000000, 0")
        a(f"v_add_u32 v{VE2}, s26, v{VA0}"); a(f"v_add_u32 v{VE1}, s26, v{VA1}")
    ar = lambda r, n: f"a[{r}:{r+n-1}]"
    RING = PD + 1 if IL else PD
    def loadl(k):
        r = 36 * (k % RING); kk = k % 2 if XP else k
        sa, sb = 32 + 2 * (k % 2), 33 + 2 * (k % 2)
        L = []
        for b in range(5):
            if F and not K3 and k < PD: pass
            elif F and not K3 and k < PD + NL: L.append(f"ds_read_b128 a[{r+16+4*b}:{r+19+4*b}], v34 offset:{5120*(k-PD) + 1024*b}")
            elif not K3 and k == 0:
                L.append(f"buffer_load_dwordx4 a[{r+16+4*b}:{r+19+4*b}], v{VE2 if b < 4 else VE1}, s[16:19], s{sa} offen offset:{1024*(b % 4)}")
            else:
                L.append(f"buffer_load_dwordx4 a[{r+16+4*b}:{r+19+4*b}], v{VA0 if b < 4 else VA1}, s[16:19], s{sa} offen offset:{1024*(b % 4)}")
            if b < 4: L.append(f"buffer_load_dwordx4 a[{r+4*b}:{r+4*b+3}], v{VB+b}, s[16:19], s{sb} offen")
        L[0] = [f"s_add_u32 s{sa}, s{sA}, {5120*kk}", f"s_add_u32 s{sb}, s{sB}, {2048*kk}", L[0]]
        return [(k, t if isinstance(t, list) else [t]) for t in L]
    def loads(k):
        for _, t in loadl(k):
            for u in t: a(u)
    LQ = [t for k in range(P0, NST) for t in loadl(k)] if IL else []
    if F and not K3:
        def ldma():
            a(f"s_mul_i32 s26, s{sW}, {5120*NL}"); a(f"v_add_u32 v34, s26, v{VA0}")
            for k in range(NL):
                for b in range(5):
                    if b % 4 == 0: a(f"s_add_u32 s27, s{sA}, {5120*(PD+k) + 1024*b}"); a(f"s_add_u32 m0, s26, {5120*k + 1024*b}")
                    a(f"buffer_load_dwordx4 v{VA0}, s[16:19], s27 offen offset:{1024*(b % 4)} lds")
        if MSK:
            a("s_mov_b32 s57, 0xf800")
            for w, mk in ((2, 0xf80), (1, 0xf0), (0, 0xf)): a(f"s_cmp_eq_u32 s{sW}, {w}"); a(f"s_cselect_b32 s57, {mk}, s57")
        fpoll(a, "KF_PB", sTT, 3, sCT, 128, "s57" if MSK else 0xffff, mid=ldma if NL else None); sp(9)
    for k in range(min(P0 if IL else PD, NST)):
        loads(k)
        if k == 0 and not F: sp(9)
    a(f"s_mul_i32 s26, s{sW}, 15360"); a(f"s_add_u32 s26, s26, {LB}"); a(f"v_add_u32 v{VRD}, s26, v{VA0}")
    if K3:
        TA, TB, TD, TV = 160, 180, 200, 204
        a("s_mul_i32 s41, s2, 9363"); a("s_lshr_b32 s41, s41, 16"); a("s_mul_i32 s42, s41, 7"); a("s_sub_u32 s42, s2, s42")
        if F:
            a(f"s_lshr_b32 s43, s{sTT}, 1"); a("s_lshl_b32 s43, s43, 12"); a(f"s_and_b32 s44, s{sTT}, 1"); a("s_lshl_b32 s44, s44, 5"); a("s_add_u32 s43, s43, s44")
            a(f"s_lshl_b32 s44, s{sCT}, 2"); a("s_add_u32 s43, s43, s44")
            a("s_lshl_b32 s44, s41, 8"); a("s_lshl_b32 s45, s42, 2"); a("s_add_u32 s44, s44, s45"); a("s_add_u32 s44, s44, 64")
            a("s_cmp_lt_u32 s2, 112"); a("s_cselect_b32 s44, s44, 0x40000000")
            a(f"v_lshlrev_b32 v240, 8, v{tk}"); a("v_add_u32 v240, s43, v240"); a(f"v_lshlrev_b32 v241, 12, v{tk}"); a("v_add_u32 v241, s44, v241")
            a("v_cmp_lt_u32 vcc, 15, v0"); a("v_cndmask_b32 v240, v240, v241, vcc")
            a("v_cmp_lt_u32 vcc, 31, v0"); a("v_bfrev_b32 v241, 2"); a("v_cndmask_b32 v240, v240, v241, vcc")
            PRE = F['pre4'](VA0, sW)
        a("s_mul_i32 s43, s41, 143360"); a(f"s_mul_i32 s44, s{sW}, {5*7168}"); a("s_add_u32 s43, s43, s44"); a("s_lshl_b32 s44, s42, 10"); a("s_add_u32 s43, s43, s44"); a(f"s_add_u32 s43, s43, {W1P}")
        a("s_cmp_lt_u32 s2, 112"); a("s_cselect_b32 s44, 0, 0x40000000")
        a(f"v_add_u32 v{TV}, s44, v{VA0}")
        a(f"v_and_b32 v{TV+1}, 1, v0"); a(f"v_mul_u32_u24 v{TV+1}, 1280, v{TV+1}"); a(f"v_sub_u32 v{TV+1}, 5120, v{TV+1}"); a(f"v_lshl_add_u32 v{TV+1}, v{g}, 4, v{TV+1}")
        a(f"s_mul_i32 s45, s{sW}, 320"); a(f"s_add_u32 s45, s45, {MODB}")
        for i in range(5):
            a(f"buffer_load_dwordx4 v[{TA+4*i}:{TA+4*i+3}], v{TV}, s[16:19], s43 offen")
            a(f"buffer_load_dwordx4 v[{TB+4*i}:{TB+4*i+3}], v{TV+1}, s[16:19], s45 offen offset:{64*i}")
            if i < 4: a("s_add_u32 s43, s43, 7168")
        a("s_lshr_b32 s46, s42, 1"); a("s_lshl_b32 s46, s46, 7"); a("s_and_b32 s47, s42, 1"); a("s_lshl_b32 s47, s47, 4"); a("s_add_u32 s46, s46, s47")
        a("s_cmp_lt_u32 s42, 6"); a("s_cselect_b32 s47, 5, 4")
        a("s_mul_i32 s41, s41, 448"); a("s_add_u32 s46, s46, s41"); a(f"s_mul_i32 s41, s{sW}, 14336"); a("s_add_u32 s46, s46, s41"); a(f"s_add_u32 s46, s46, {T12P}")
        a(f"v_lshlrev_b32 v{TV+2}, s47, v{g}"); a(f"v_mul_u32_u24 v{TV+3}, 7168, v{tk}"); a(f"v_add3_u32 v{TV+2}, v{TV+2}, v{TV+3}, s44")
        a(f"v_cmp_gt_u32 vcc, 2, v{tk}"); a(f"v_bfrev_b32 v{TV+3}, 2"); a(f"v_cndmask_b32 v{TV+2}, v{TV+3}, v{TV+2}, vcc")
    a(f"s_lshl_b32 s26, s{sTT}, 6"); a(f"s_lshl_b32 s27, s{sW}, 4"); a("s_add_u32 s26, s26, s27")
    a(f"s_mul_i32 s27, s{sCT}, 160")
    a("s_mul_i32 s36, s26, 1280"); a("s_add_u32 s36, s36, s27")
    a("s_lshr_b32 s28, s26, 5"); a("s_mul_i32 s28, s28, 40960"); a(f"s_mul_i32 s29, s{sCT}, 5120"); a("s_add_u32 s28, s28, s29")
    a("s_and_b32 s29, s26, 16"); a("s_lshl_b32 s29, s29, 4"); a("s_add_u32 s28, s28, s29")
    a(f"s_add_u32 s37, s28, {X1B}"); a(f"s_add_u32 s38, s28, {Y2B}")
    a(f"s_mul_i32 s39, s{sCT}, 320")
    RM0, RM4, FR0, FR4, MF0, MF4 = 17, 18, 19, 20, 21, 22
    a(f"v_mul_u32_u24 v{RM4}, 1280, v{tk}"); a(f"v_lshl_add_u32 v{RM0}, v{g}, 4, v{RM4}"); a(f"v_lshl_add_u32 v{RM4}, v{g}, 3, v{RM4}")
    a(f"v_lshlrev_b32 v{FR0}, 9, v{g}"); a(f"v_lshl_add_u32 v{FR0}, v{tk}, 4, v{FR0}")
    a(f"v_lshrrev_b32 v{FR4}, 1, v{g}"); a(f"v_lshlrev_b32 v{FR4}, 9, v{FR4}"); a(f"v_lshl_add_u32 v{FR4}, v{tk}, 4, v{FR4}")
    a(f"v_and_b32 v23, 1, v{g}"); a(f"v_lshl_add_u32 v{FR4}, v23, 3, v{FR4}"); a(f"v_add_u32 v{FR4}, 4096, v{FR4}")
    a(f"v_lshlrev_b32 v{MF0}, 5, v{g}"); a(f"v_lshlrev_b32 v{MF4}, 4, v{g}")
    XI, G1, G2 = 24, 36, 56
    def eploads():
        if K3:
            a(f"buffer_load_dwordx4 v[{XI}:{XI+3}], v{RM0}, s[4:7], s36 offen"); a(f"buffer_load_dwordx4 v[{XI+4}:{XI+7}], v{RM0}, s[4:7], s36 offen offset:64")
            a(f"buffer_load_dwordx2 v[{XI+8}:{XI+9}], v{RM4}, s[4:7], s36 offen offset:128")
        elif not F:
            a(f"buffer_load_dwordx4 v[{XI}:{XI+3}], v{FR0}, s[16:19], s37 offen"); a(f"buffer_load_dwordx4 v[{XI+4}:{XI+7}], v{FR0}, s[16:19], s37 offen offset:2048")
            a(f"buffer_load_dwordx2 v[{XI+8}:{XI+9}], v{FR4}, s[16:19], s37 offen")
        for G, sec in ([(G1, 2), (G2, 4)] if K3 else [(G1, 5)]):
            a(f"s_add_u32 s40, s39, {MODF + 2560*sec}")
            for i, off in enumerate((0, 16, 128, 144)): a(f"buffer_load_dwordx4 v[{G+4*i}:{G+4*i+3}], v{MF0}, s[16:19], s40 offen offset:{off}")
            a(f"buffer_load_dwordx4 v[{G+16}:{G+19}], v{MF4}, s[16:19], s40 offen offset:256")
        if not K3:
            a(f"v_lshlrev_b32 v23, 3, v{g}")
            a(f"buffer_load_dwordx4 v[{G2}:{G2+3}], v{MF4}, s[{SB2}:{SB2+3}], s27 offen"); a(f"buffer_load_dwordx4 v[{G2+4}:{G2+7}], v{MF4}, s[{SB2}:{SB2+3}], s27 offen offset:64")
            a(f"buffer_load_dwordx2 v[{G2+8}:{G2+9}], v23, s[{SB2}:{SB2+3}], s27 offen offset:128")
    acc = lambda tb, b: ACC + 4 * (5 * tb + b)
    sp(2)
    for k in range(NST):
        r = 36 * (k % RING)
        if k == 1: sp(3)
        if k == NST // 2: sp(4)
        order = [(tb, b) for b in range(5) for tb in range(4)]
        if k == NST - 1: order = [(tb, b) for tb in (1, 2, 3, 0) for b in range(5)]
        for i, (tb, b) in enumerate(order):
            D = vr(acc(tb, b), 4)
            a(f"v_mfma_f32_16x16x32_bf16 {D}, {ar(r+16+4*b,4)}, {ar(r+4*tb,4)}, {'0' if k == 0 else D}")
            if LQ and LQ[0][0] <= k + PD and (i % 2 == 1 or LQ[0][0] < k + PD):
                for u in LQ.pop(0)[1]: a(u)
            if F and K3 and not LQ and k > NST - PD - 1 and PRE and i % PPM == 1:
                for t, tok in PRE.pop(0): a(t, tok=tok)
            if k == NST - 1 and i >= 7 and i < 22 and i - 7 < 15:
                j = i - 7; tb2, b2 = 1 + j // 5, j % 5
                a(f"ds_write_b128 v{VWR+tb2-1}, {vr(acc(tb2, b2), 4)} offset:{1024*b2}")
        if k + PD < NST and not IL: loads(k + PD)
        if K3 and k == 8:
            for i in range(5): a(f"v_mfma_f32_16x16x32_bf16 v[{TD}:{TD+3}], v[{TA+4*i}:{TA+4*i+3}], v[{TB+4*i}:{TB+4*i+3}], {'0' if i == 0 else vr(TD, 4)}")
        if K3 and k == 9: a(f"buffer_store_dwordx4 v[{TD}:{TD+3}], v{TV+2}, s[16:19], s46 offen {SC}")
        if k == max(0, NST - PD - 1): eploads()
    for j in (13, 14): a(f"ds_write_b128 v{VWR+2}, {vr(acc(3, j % 5), 4)} offset:{1024*(j % 5)}")
    sp(5)
    a.barrier()
    sp(6)
    R = BUF
    for i in range(3):
        for b in range(5): a(f"ds_read_b128 {vr(R+20*i+4*b, 4)}, v{VRD} offset:{5120*i+1024*b}")
    for i in range(3):
        for e in range(20): a(f"v_add_f32 v{ACC+e}, v{ACC+e}, v{R+20*i+e}")
    T, U, W = 100, 120, 140
    S1, S2 = 150, 151
    for i in range(10):
        x, y = ACC + 2*i, ACC + 2*i + 1
        rnd2(a, x, y, T, MK)
        if not K3:
            unpack2(a, U, U+1, G2+i, MK)
            a(f"v_add_f32 v{x}, v{x}, v{U}"); a(f"v_add_f32 v{y}, v{y}, v{U+1}")
            rnd2(a, x, y, T, MK)
        a(f"v_mul_f32 v{x}, v{x}, v{G1+2*i}"); a(f"v_mul_f32 v{y}, v{y}, v{G1+2*i+1}")
        rnd2(a, x, y, T, MK)
        unpack2(a, U, U+1, XIL[i] if (F and not K3) else XI+i, MK)
        a(f"v_add_f32 v{x}, v{x}, v{U}"); a(f"v_add_f32 v{y}, v{y}, v{U+1}")
        if K3:
            rnd2(a, x, y, XIL[i] if F else T+2+i, MK)
            if i == 0:
                a(f"v_add_f32 v{S1}, v{x}, v{y}"); a(f"v_mul_f32 v{S2}, v{x}, v{x}")
            else:
                a(f"v_add_f32 v{S1}, v{S1}, v{x}"); a(f"v_fmac_f32 v{S2}, v{x}, v{x}"); a(f"v_add_f32 v{S1}, v{S1}, v{y}")
            a(f"v_fmac_f32 v{S2}, v{y}, v{y}")
            a(f"v_mul_f32 v{x}, v{x}, v{G2+2*i}"); a(f"v_mul_f32 v{y}, v{y}, v{G2+2*i+1}")
            a(f"v_cvt_pk_bf16_f32 v{W+i}, v{x}, v{y}")
        else:
            a(f"v_cvt_pk_bf16_f32 v{T+2+i}, v{x}, v{y}")
    P = T + 2
    if K3:
        for base, so in ((W, 38), (P, 37))[:1 if F else 2]:
            a(f"buffer_store_dwordx4 {vr(base,4)}, v{FR0}, s[16:19], s{so} offen {SC}"); a(f"buffer_store_dwordx4 {vr(base+4,4)}, v{FR0}, s[16:19], s{so} offen offset:2048 {SC}")
            a(f"buffer_store_dwordx2 {vr(base+8,2)}, v{FR4}, s[16:19], s{so} offen {SC}")
        for w in (16, 32):
            xsum_swap(a, S1, U, w); xsum_swap(a, S2, U+1, w)
        a(f"v_lshlrev_b32 v{U}, 3, v{tk}")
        a(f"s_lshl_b32 s26, s{sTT}, 9"); a(f"s_lshl_b32 s27, s{sW}, 7"); a("s_add_u32 s26, s26, s27"); a(f"s_lshl_b32 s27, s{sCT}, 14"); a("s_add_u32 s26, s26, s27")
        a(f"s_add_u32 s26, s26, {STAT}")
        a(f"buffer_store_dwordx2 v[{S1}:{S2}], v{U}, s[16:19], s26 offen {SC}")
    else:
        o = f"s[{SO}:{SO+3}]"
        a(f"buffer_store_dwordx4 {vr(P,4)}, v{RM0}, {o}, s36 offen {SC}"); a(f"buffer_store_dwordx4 {vr(P+4,4)}, v{RM0}, {o}, s36 offen offset:64 {SC}")
        a(f"buffer_store_dwordx2 {vr(P+8,2)}, v{RM4}, {o}, s36 offen offset:128 {SC}")
    sp(7)
    if F:
        if K3: assert not PRE
        return
    a.dump(16, which, 10)
    a.label(f"{nm}_END", flush=False)
    a("s_endpgm")
    return dict(name=f"k{which}_kernel", asm=a, grid=256, block=256, lds=61440, vgprs=224 + 36 * RING, accum=224)
```

```python
from common import *
class Rec:
    def __init__(self): self.l = []
    def __call__(self, text, tok=None): self.l.append((text, tok))
def gen_k4(PFA=4, SC='sc1', P0=15, LPM=3, MAP=1, FILL=3, TAILF=6, DRY=0, F=None, PPM=2, C34=1, MSK=1):
    a = F['a'] if F else Asm()
    sp = (lambda k, real=False: a.stamp(F['st'][(4, k)], real) if (4, k) in F['st'] else None) if F else a.stamp
    if F: P0 = F.get('P0', 16)
    MK = 30
    sW, sCT, sTT, sA, sB, sM0 = 20, 21, 22, 23, 24, 25
    L16, VB, VT = 1, 2, 3
    TL = 143360
    ACC = 32
    AB = 88
    NBA = 8
    EP = 120
    if not F:
        a("s_cmp_ge_u32 s2, 256"); a("s_cbranch_scc1 K4_END")
        sp(0, True); sp(1)
        load_srds(a, [(16, KA_WS), (8, KA_B1)])
    else: fsig(a, 240); sp(1)
    a(f"s_mov_b32 s{MK}, 0xffff0000")
    a(f"v_readfirstlane_b32 s{sW}, v0"); a(f"s_lshr_b32 s{sW}, s{sW}, 6")
    if MAP == 0:
        a(f"s_and_b32 s{sTT}, s2, 7"); a(f"s_lshl_b32 s{sTT}, s{sTT}, 1"); a("s_bfe_u32 s26, s2, 0x10003"); a(f"s_add_u32 s{sTT}, s{sTT}, s26")
        a(f"s_lshr_b32 s{sCT}, s2, 4")
    else:
        a(f"s_bfe_u32 s{sTT}, s2, 0x20001"); a(f"s_lshl_b32 s{sTT}, s{sTT}, 2"); a("s_bfe_u32 s26, s2, 0x20003"); a(f"s_add_u32 s{sTT}, s{sTT}, s26")
        a(f"s_and_b32 s{sCT}, s2, 1"); a(f"s_lshl_b32 s{sCT}, s{sCT}, 3"); a("s_lshr_b32 s26, s2, 5"); a(f"s_add_u32 s{sCT}, s{sCT}, s26")
    a(f"s_mul_i32 s{sA}, s{sCT}, 143360"); a(f"s_add_u32 s{sA}, s{sA}, {W1P}")
    a(f"s_mul_i32 s{sM0}, s{sW}, 7168"); a(f"s_add_u32 s{sA}, s{sA}, s{sM0}")
    a(f"s_lshl_b32 s26, s{sTT}, 2"); a(f"s_add_u32 s26, s26, s{sW}")
    a(f"s_mul_i32 s{sB}, s26, 40960"); a(f"s_add_u32 s{sB}, s{sB}, {Y2B}")
    la, g, tk = 4, 5, 6
    a(f"v_and_b32 v{la}, 63, v0"); a(f"v_lshrrev_b32 v{g}, 4, v{la}"); a(f"v_and_b32 v{tk}, 15, v0")
    a(f"v_lshlrev_b32 v{L16}, 4, v{la}")
    a(f"v_lshlrev_b32 v{VB}, 9, v{g}"); a(f"v_lshl_add_u32 v{VB}, v{tk}, 4, v{VB}")
    ar = lambda r, n: f"a[{r}:{r+n-1}]"
    br = lambda ks, tb: ar(8*ks + 4*tb + (92 if (F and ks >= 16) else 0), 4)
    U = []
    def chunk(c):
        for h in range(2):
            pre = [(f"s_add_u32 s27, s{sA}, {28672*c + 4096*h}", None), (f"s_add_u32 m0, s{sM0}, {28672*c + 4096*h}", None)]
            for i in range(4 if h == 0 else 3):
                U.append(pre + [(f"buffer_load_dwordx4 v{L16}, s[16:19], s27 offen offset:{1024*i} lds", ('c', c))]); pre = []
    def bl(ks):
        pre = [(f"s_add_u32 s28, s{sB}, {2048*ks}", None)] if ks % 2 == 0 else []
        for tb in range(2):
            U.append(pre + [(f"buffer_load_dwordx4 {br(ks, tb)}, v{VB}, s[16:19], s28 offen offset:{2048*(ks % 2) + 256*tb}", None)]); pre = []
    ST = EP + 20
    B1 = ST + 8
    def t12():
        r = Rec()
        r("v_cmp_lt_u32 vcc, 111, v0"); r(f"v_mov_b32 v8, {7168-448}"); r("v_cndmask_b32 v7, 0, v8, vcc")
        r("v_lshl_add_u32 v7, v0, 2, v7")
        r("v_cmp_lt_u32 vcc, 223, v0"); r("v_mov_b32 v8, 0x40000000"); r("v_cndmask_b32 v7, v7, v8, vcc")
        r(f"s_mul_i32 s29, s{sCT}, 448"); r(f"s_add_u32 s29, s29, {T12P}")
        if F and MSK: r("@T12")
        for i in range(4):
            if i: r("s_add_u32 s29, s29, 14336")
            r(f"buffer_load_dword v{EP+i}, v7, s[16:19], s29 offen{' sc1' if F else ''}")
            U.append(r.l); r = Rec()
    def stats():
        r = Rec()
        r(f"v_lshlrev_b32 v9, 15, v{g}"); r(f"v_lshl_add_u32 v9, v{tk}, 3, v9")
        r("s_lshl_b32 s29, s26, 8"); r(f"s_add_u32 s29, s29, {STAT}"); r("s_add_u32 s31, s29, 16384")
        for tb in range(2):
            for h in range(2):
                r(f"buffer_load_dwordx2 {vr(ST+4*tb+2*h, 2)}, v9, s[16:19], s{(29, 31)[h]} offen offset:{128*tb}")
                U.append(r.l); r = Rec()
    def b1l():
        r = Rec()
        r(f"v_lshlrev_b32 v10, 4, v{g}"); r(f"v_lshlrev_b32 v11, 3, v{g}")
        r(f"s_mul_i32 s29, s{sCT}, 224"); r("v_add_u32 v10, s29, v10"); r("v_add_u32 v11, s29, v11")
        for p in range(3):
            r(f"buffer_load_dwordx4 {vr(B1+4*p, 4)}, v10, s[8:11], 0 offen offset:{64*p}"); U.append(r.l); r = Rec()
        r(f"buffer_load_dwordx2 {vr(B1+12, 2)}, v11, s[8:11], 0 offen offset:192"); U.append(r.l)
    if F:
        b1l()
        if C34: chunk(3); chunk(4)
    for c in range(5):
        if c == (4 if F else 2): t12()
        if c == (4 if F else 3):
            stats()
            if not F: b1l()
        if not F or (c >= 3 and not C34): chunk(c)
        for ks in range(4*c, 4*c+4): bl(ks)
    def issue(n=1):
        for _ in range(n):
            if U:
                for t, tok in U.pop(0):
                    if t == "@T12":
                        a("s_and_b32 s59, s61, 0x7f0000"); a("s_cmp_eq_u32 s59, 0x7f0000"); a("s_cbranch_scc1 KF_PT_A")
                        st_ = (a.vm_done, dict(a.pend), a.vm_n)
                        fpoll(a, "KF_PT", 0, 0, 0, 0, 0x7f0000, setup=False)
                        a.vm_n = st_[2]; a.vm_done = st_[0]; a.pend = st_[1]
                    else: a(t, tok=tok)
    if F:
        issue(4)
        PRE = F['pre5'](L16, sW)
        a(f"s_lshl_b32 s35, s{sTT}, 12"); a(f"s_lshl_b32 s36, s{sCT}, 2"); a("s_add_u32 s35, s35, s36"); a("s_add_u32 s35, s35, 128")
        a(f"v_lshlrev_b32 v3, 8, v{tk}"); a("v_add_u32 v3, s35, v3"); a("v_cmp_lt_u32 vcc, 15, v0"); a("v_bfrev_b32 v7, 2"); a("v_cndmask_b32 v3, v3, v7, vcc")
    else: issue(P0)
    a(f"v_add_u32 v12, 0x10000, v{L16}"); a(f"v_add_u32 v13, 0x20000, v{L16}")
    T1, T2 = 164, 192
    MU, RS = 14, 16
    BF = 220
    f2 = Rec()
    for i in range(1, 4): f2(f"v_add_f32 v{EP}, v{EP}, v{EP+i}")
    f2(f"v_lshlrev_b32 v8, 2, v0"); f2(f"v_add_u32 v8, {TL}, v8"); f2(f"ds_write_b32 v8, v{EP}")
    f3 = Rec()
    a(f"v_lshlrev_b32 v26, 5, v{g}"); a(f"v_add_u32 v26, {TL}, v26"); a(f"v_lshlrev_b32 v27, 4, v{g}"); a(f"v_add_u32 v27, {TL}, v27")
    tr = Rec()
    for T, o in ((T1, 0), (T2, 448)):
        for b in range(6): tr(f"ds_read_b128 {vr(T+4*b, 4)}, v26 offset:{o + 128*(b >> 1) + 16*(b & 1)}")
        tr(f"ds_read_b128 {vr(T+24, 4)}, v27 offset:{o + 384}")
    st = Rec()
    for tb in range(2):
        s1, s2 = ST + 4*tb, ST + 4*tb + 1
        st(f"v_add_f32 v{s1}, v{s1}, v{s1+2}"); st(f"v_add_f32 v{s2}, v{s2}, v{s2+2}")
        for w in (16, 32): xsum_swap(st, s1, 18, w); xsum_swap(st, s2, 19, w)
        st(f"v_mul_f32 v{s1}, {f32(1/640)}, v{s1}"); st(f"v_mul_f32 v{s2}, {f32(1/640)}, v{s2}")
        st(f"v_fma_f32 v{s2}, -v{s1}, v{s1}, v{s2}"); st(f"v_max_f32 v{s2}, 0, v{s2}")
        rnd2(st, s1, s2, 18, MK)
        st(f"v_add_f32 v{s2}, {f32(1e-5)}, v{s2}"); rnd1(st, s2)
        st(f"v_sqrt_f32 v{s2}, v{s2}"); rnd1(st, s2)
        st(f"v_rcp_f32 v{RS+tb}, v{s2}"); st(f"v_sub_f32 v{MU+tb}, 0, v{s1}")
        st(f"v_mul_f32 v{MU+tb}, v{MU+tb}, v{RS+tb}")
    for i, x in enumerate(st.l):
        f3.l.append(x)
        if i % 3 == 2 and tr.l: f3.l.append(tr.l.pop(0))
    f3.l += tr.l
    for i in range(14): unpack2(f3, BF+2*i, BF+2*i+1, B1+i, MK)
    f3(f"v_mov_b32 v24, v{RS+1}"); f3(f"v_mov_b32 v25, v{RS+1}"); f3(f"v_mov_b32 v{RS+1}, v{RS}")
    f3(f"v_sub_f32 v{MU}, v{MU}, v{MU+1}")
    for i in range(28):
        f3(f"v_fmac_f32 v{T2+i}, v{T1+i}, v{MU+1}")
        f3(f"v_fma_f32 v{T1+i}, v{T1+i}, v{MU}, v{T2+i}")
    a(f"v_lshrrev_b32 v28, 1, v{g}"); a("v_lshlrev_b32 v28, 9, v28"); a(f"v_lshl_add_u32 v28, v{tk}, 4, v28"); a(f"v_and_b32 v19, 1, v{g}"); a("v_lshl_add_u32 v28, v19, 3, v28")
    a(f"s_mul_i32 s32, s26, {224*512}"); a(f"s_mul_i32 s33, s{sCT}, 7168"); a("s_add_u32 s32, s32, s33"); a(f"s_add_u32 s32, s32, {UBUF}")
    a("s_add_u32 s33, s32, 4096"); a("s_add_u32 s34, s32, 6144")
    acc = lambda tb, b: ACC + 4 * (7 * tb + b)
    def epi(b):
        ch = []
        for tb in range(2):
            for h in range(2):
                r = Rec(); i = 2*b + h; x = acc(tb, b) + 2*h; t = 20 + 2*tb + h
                E = (T1, T2)[tb] + 2*i
                r(f"v_pk_fma_f32 {vr(x, 2)}, {vr(x, 2)}, {vr((RS, 24)[tb], 2)}, {vr(E, 2)}")
                rnd2(r, x, x+1, t, MK)
                r(f"v_pk_add_f32 {vr(x, 2)}, {vr(x, 2)}, {vr(BF+2*i, 2)}")
                r(f"v_cvt_pk_bf16_f32 v{t}, v{x}, v{x+1}"); r(f"v_pk_max_i16 v{t}, v{t}, 0")
                unpack2(r, x, x+1, t, MK)
                r(f"v_pk_mul_f32 {vr(x, 2)}, {vr(x, 2)}, {vr(x, 2)}")
                r(f"v_cvt_pk_bf16_f32 v{acc(tb, b & ~1) + 2*(b & 1) + h}, v{x}, v{x+1}")
                ch.append(r.l)
        out = [c[k] for k in range(len(ch[0])) for c in ch]
        for tb in range(2):
            d = acc(tb, b & ~1)
            if b in (1, 3): out.append((f"buffer_store_dwordx4 {vr(d, 4)}, v{VB}, s[16:19], s32 offen offset:{2048*(b // 2) + 256*tb} {SC}", None))
            if b == 5: out.append((f"buffer_store_dwordx4 {vr(d, 4)}, v{VB}, s[16:19], s33 offen offset:{256*tb} {SC}", None))
            if b == 6: out.append((f"buffer_store_dwordx2 {vr(d, 2)}, v28, s[16:19], s34 offen offset:{256*tb} {SC}", None))
        return out
    seq = [(ks, b) for ks in range(16) for b in range(7)] + [(ks, b) for b in range(7) for ks in range(16, 20)]
    def rd(i):
        ks, b = seq[i]; off = ks * 7168 + b * 1024
        base = (L16, 12, 13)[off >> 16]
        a(f"ds_read_b128 {vr(AB + 4*(i % NBA), 4)}, v{base} offset:{off & 0xffff}")
    sp(2)
    if DRY:
        a.wait(lg=0)
        a("s_mov_b64 exec, 0")
        for w in range(3): a(f"s_cmp_eq_u32 s{sW}, {w}"); a(f"s_cbranch_scc1 K4_DRY{w}")
        a("s_branch K4_DRY3")
        a.raw("K4_RET:"); a("s_mov_b64 exec, -1"); a.raw("  s_waitcnt lgkmcnt(0)"); a.nop(16)
    dry = {122: 1, 129: 2, 136: 3}
    if F:
        if MSK: a(f"s_cmp_ge_u32 s{sW}, 2"); a("s_cselect_b32 s57, 8, 0"); a("s_lshl_b32 s57, 0xff, s57")
        fpoll(a, "KF_PA", sTT, 4, sCT, 0, "s57" if MSK else 0x7fffff, mid=(lambda: issue(14)) if C34 else None); sp(9); issue(P0)
    else: a.wait_tok(('c', 0)); a.barrier()
    sp(3)
    for i in range(PFA): rd(i)
    FL = []; m = 0
    for i, (ks, b) in enumerate(seq):
        if i == 70: sp(4)
        if i == 112:
            while U: issue()
            for t, tok in FL: a(t)
            FL = []
            sp(5)
        if i > 112 and i % 4 == 0:
            for t, tok in FL: a(t)
            FL = epi(b - 1)
        if DRY and i in dry: a("s_cbranch_execz K4_RET"); a.raw(f"K4_DRY{dry[i]}:")
        for tb in range(2):
            D = vr(acc(tb, b), 4)
            a(f"v_mfma_f32_16x16x32_bf16 {D}, {vr(AB + 4*(i % NBA), 4)}, {br(ks, tb)}, {'0' if ks == 0 else D}")
            m += 1
            if tb == 0:
                n = i + PFA
                if n < len(seq):
                    if n % 28 == 0:
                        while ('c', n // 28) not in a.tok or any(tok == ('c', n // 28) for u in U for _, tok in u): issue()
                        if DRY and n == 112: a.wait(vm=0)
                        if not F or n >= 84: a.wait_tok(('c', n // 28)); a("s_barrier")
                        if DRY and n == 112: a.raw(f"K4_DRY0:"); assert not U
                        if n == 56: FL += f2.l
                        if n == 84: FL += f3.l
                    rd(n)
            if U and m % LPM == 0: issue()
            if F and PRE and m % PPM == 0 and (i >= 112 or (i >= 102 and len(PRE) > 20)):
                for t, tok in PRE.pop(0): a(t, tok=tok)
            for _ in range(TAILF if i >= 112 else FILL):
                if FL: a(FL.pop(0)[0])
    for t, tok in FL + epi(6): a(t)
    if DRY: a("s_cbranch_execz K4_RET")
    sp(6)
    if F:
        assert not PRE
        fsig(a, 3); sp(7)
        return
    a.dump(16, 4, 7)
    a.label("K4_END", flush=False)
    a("s_endpgm")
    return dict(name="k4_kernel", asm=a, grid=256, block=256, lds=143360 + 1024, vgprs=256 + 160, accum=256)
```
